```python
import torch

def _softmax(x, axis=-1):
    return torch.softmax(x, dim=axis)

def _gelu(x):
    return torch.nn.functional.gelu(x, approximate='tanh')

def _silu(x):
    return torch.nn.functional.silu(x)

def _sigmoid(x):
    return torch.sigmoid(x)

def _layernorm(x, axis=-1, eps=1e-05):
    m = x.mean(dim=axis, keepdim=True)
    v = x.var(dim=axis, keepdim=True, unbiased=False)
    return (x - m) / torch.sqrt(v + eps)

def _scatter_add(tgt, idx, src, axis=0):
    return tgt.clone().index_add_(axis, idx, src)

def _segment_sum(src, seg, n):
    out = torch.zeros((n,) + src.shape[1:], dtype=src.dtype)
    return out.index_add_(0, seg, src)

def _pad(x, pw):
    flat = tuple((v for pair in reversed(pw) for v in pair))
    return torch.nn.functional.pad(x, flat)
kernel_name = 'standalone__swin_window_attn__vision'

def setup_inputs():

    _w = lambda a: (lambda t: t.to(torch.bfloat16) if t.is_floating_point() else t)(torch.as_tensor(a))
    H = W = 384 // 8 * 8
    C, win = (192, 8)
    return {'x': _w((lambda *s: torch.randn(*s, dtype=torch.bfloat16) * 0.2)(1, H, W, C)), 'wqkv': _w((lambda *s: torch.randn(*s, dtype=torch.bfloat16) * 0.2)(C, 3 * C)), 'wo': _w((lambda *s: torch.randn(*s, dtype=torch.bfloat16) * 0.05)(C, C))}

def reference(x, wqkv, wo):
    B, H, W, C = x.shape
    win = 8
    nh, nw = (H // win, W // win)
    xw = (lambda x, *d: x.permute(*d))(x.reshape(B, nh, win, nw, win, C), 0, 1, 3, 2, 4, 5)
    xw = xw.reshape(B * nh * nw, win * win, C)
    qkv = xw @ wqkv
    q, k, v = (qkv[..., :C].clone(), qkv[..., C:2 * C].clone(), qkv[..., 2 * C:].clone())
    scale = C ** (-0.5)
    p = _softmax(torch.einsum('bqc,bkc->bqk', q, k) * scale, axis=-1)
    o = torch.einsum('bqk,bkc->bqc', p, v) @ wo
    o = (lambda x, *d: x.permute(*d))(o.reshape(B, nh, nw, win, win, C), 0, 1, 3, 2, 4, 5)
    return o.reshape(B, H, W, C)
```

```python
class Reg:
    def __init__(self, kind, base, n=1):
        self.kind, self.base, self.n = kind, base, n

    def __str__(self):
        if self.n == 1:
            return f"{self.kind}{self.base}"
        return f"{self.kind}[{self.base}:{self.base + self.n - 1}]"

    def regs(self):
        return {f"{self.kind}{self.base + i}" for i in range(self.n)}

    def sub(self, off, n=1):
        assert off + n <= self.n, (off, n, self.n)
        return Reg(self.kind, self.base + off, n)

    def __getitem__(self, i):
        return self.sub(i, 1)


def V(b, n=1):
    return Reg("v", b, n)


def A(b, n=1):
    return Reg("a", b, n)


def S(b, n=1):
    return Reg("s", b, n)


def _regs(x):
    if isinstance(x, Reg):
        return x.regs()
    if isinstance(x, str) and x in ("vcc", "scc", "m0", "exec"):
        return {x}
    return set()


class I:
    def __init__(self, text, rd=(), wr=(), kind="valu", cost=1, **meta):
        self.text = text
        self.rd = set()
        self.wr = set()
        for r in rd:
            self.rd |= _regs(r)
        for w in wr:
            self.wr |= _regs(w)
        self.kind = kind
        self.cost = cost
        self.meta = meta

    def __repr__(self):
        return self.text


def mfma(D, Aop, Bop, C):
    rd = [Aop, Bop]
    ctext = "0"
    if isinstance(C, Reg):
        rd.append(C)
        ctext = str(C)
    ins = I(f"v_mfma_f32_32x32x16_bf16 {D}, {Aop}, {Bop}, {ctext}", rd, [D], kind="mfma")
    ins.meta["D"] = D
    ins.meta["C"] = C if isinstance(C, Reg) else None
    ins.meta["AB"] = Aop.regs() | Bop.regs()
    return ins


TRANS = ("v_exp_f32", "v_rcp_f32", "v_log_f32", "v_rsq_f32", "v_sqrt_f32")


def valu(op, dst, *srcs, extra_rd=(), extra_wr=()):
    txt = f"{op} {dst}, " + ", ".join(str(s) for s in srcs)
    kind = "trans" if op in TRANS else "valu"
    rd = list(srcs) + list(extra_rd)
    if op.startswith("v_fmac"):
        rd.append(dst)
    return I(txt, rd, [dst] + list(extra_wr), kind=kind, cost=2 if kind == "trans" else 1)


def permswap(a, b):
    return I(f"v_permlane32_swap_b32 {a}, {b}", [a, b], [a, b], kind="perm")


def salu(op, dst, *srcs, scc=True):
    txt = f"{op} {dst}, " + ", ".join(str(s) for s in srcs)
    wr = [dst] + (["scc"] if scc else [])
    rd = list(srcs)
    if op.startswith("s_cselect") or op.startswith("s_addc"):
        rd.append("scc")
    return I(txt, rd, wr, kind="salu")


def scmp(op, a, b):
    return I(f"{op} {a}, {b}", [a, b], ["scc"], kind="salu")


def ds_read128(dst, addr, off=0, **meta):
    assert 0 <= off < 65536
    return I(f"ds_read_b128 {dst}, {addr} offset:{off}", [addr], [dst], kind="ds_read", **meta)


def ds_write128(addr, src, off=0, **meta):
    assert 0 <= off < 65536
    return I(f"ds_write_b128 {addr}, {src} offset:{off}", [addr, src], [], kind="ds_write", **meta)


def buf_load(dst, voff, srd, soff, off=0, op="buffer_load_dwordx4", mods=""):
    assert 0 <= off < 4096
    return I(f"{op} {dst}, {voff}, {srd}, {soff} offen offset:{off}{mods}",
             [voff, srd, soff], [dst], kind="vload")


def buf_dma(voff, srd, soff, off=0, mods=""):
    assert 0 <= off < 4096
    return I(f"buffer_load_dwordx4 {voff}, {srd}, {soff} offen offset:{off}{mods} lds",
             [voff, srd, soff, "m0"], [], kind="dma")


def buf_store(src, voff, srd, soff, off=0, op="buffer_store_dwordx4", mods=""):
    assert 0 <= off < 4096
    return I(f"{op} {src}, {voff}, {srd}, {soff} offen offset:{off}{mods}",
             [src, voff, srd, soff], [], kind="vstore", data=src.regs())


def raw(text, rd=(), wr=(), kind="misc"):
    return I(text, rd, wr, kind=kind)


def label(name):
    return I(f"{name}:", kind="label")


def nop(n):
    return I(f"s_nop {n}", kind="nop", n=n)


def waitcnt(vm=None, lgkm=None):
    parts = []
    if vm is not None:
        parts.append(f"vmcnt({vm})")
    if lgkm is not None:
        parts.append(f"lgkmcnt({lgkm})")
    return I("s_waitcnt " + " ".join(parts), kind="wait", vm=vm, lgkm=lgkm)


def barrier():
    return I("s_barrier", kind="barrier")


class Sched:
    def __init__(self, spine):
        self.spine = spine
        self.gaps = {g: [] for g in range(-1, len(spine))}

    def put(self, g, *ins):
        for x in ins:
            if isinstance(x, (list, tuple)):
                self.gaps[g].extend(x)
            else:
                self.gaps[g].append(x)

    def spread(self, ins, g0, g1):
        n = len(ins)
        ng = g1 - g0 + 1
        for k, x in enumerate(ins):
            g = g0 + (k * ng) // n
            self.gaps[g].append(x)

    def linear(self):
        out = list(self.gaps[-1])
        for g, m in enumerate(self.spine):
            out.append(m)
            out.extend(self.gaps[g])
        return out

    def report(self):
        return " ".join(str(sum(i.cost for i in self.gaps[g])) for g in range(-1, len(self.spine)))


def insert_lgkm_waits(body, loop=False):
    def run(seq, pend):
        out = []
        pend = list(pend)
        for ins in seq:
            need = -1
            touched = ins.rd | ins.wr
            for k, p in enumerate(pend):
                if p["dst"] & touched:
                    need = max(need, k)
                if ins.kind == "barrier" and p["must"]:
                    need = max(need, k)
            if ins.kind == "wait" and ins.meta.get("lgkm") is not None:
                n = ins.meta["lgkm"]
                pend = pend[len(pend) - n:] if n < len(pend) else pend
                if n == 0:
                    pend = []
            if need >= 0:
                n = len(pend) - 1 - need
                n = min(n, 15)
                out.append(waitcnt(lgkm=n))
                pend = pend[len(pend) - n:] if n > 0 else []
            out.append(ins)
            if ins.kind == "ds_read":
                pend.append(dict(dst=set(ins.wr), must=ins.meta.get("must", False)))
            elif ins.kind == "ds_write":
                pend.append(dict(dst=set(), must=ins.meta.get("must", True)))
        return out, pend

    if not loop:
        out, _ = run(body, [])
        return out
    pend = []
    for _ in range(3):
        out, pend = run(body, pend)
    return out


def _ws(ins):
    if ins.kind == "label":
        return 0
    if ins.kind == "nop":
        return ins.meta["n"] + 1
    return 1


def _required(prod, cons):
    req = 0
    pk, ck = prod.kind, cons.kind
    vec_like = ("valu", "trans", "perm")
    if pk == "mfma":
        D = prod.wr
        if ck == "mfma":
            if D & cons.meta["AB"]:
                req = max(req, 12)
            C = cons.meta["C"]
            if C is not None and (C.regs() & D):
                if not (str(C) == str(prod.meta["D"])):
                    req = max(req, 10)
            if (cons.wr & D) and not (C is not None and str(C) == str(prod.meta["D"])):
                req = max(req, 12)
        elif ck in vec_like or ck in ("ds_read", "ds_write", "vload", "vstore", "dma", "misc"):
            if D & (cons.rd | cons.wr):
                req = max(req, 12)
        C = prod.meta["C"]
        if C is not None and ck in vec_like and (C.regs() & cons.wr):
            req = max(req, 7)
    if pk in vec_like:
        vw = {r for r in prod.wr if r[0] in "va" and r not in ("vcc",)}
        sw = {r for r in prod.wr if r[0] == "s" and r != "scc"} | ({"vcc"} & prod.wr)
        if ck == "mfma" and (vw & cons.rd):
            req = max(req, 2)
        if ck == "perm" and (vw & cons.rd):
            req = max(req, 2)
        if pk == "trans" and ck in ("valu", "perm") and (vw & cons.rd):
            req = max(req, 1)
        if prod.meta.get("rfl") is None and cons.meta.get("rfl") and (vw & cons.rd):
            req = max(req, 1)
        if sw:
            if ck in ("vload", "vstore", "dma") and (sw & cons.rd):
                req = max(req, 5)
            if ck in vec_like and (sw & cons.rd):
                req = max(req, 2)
            if ck == "salu" and (sw & cons.rd):
                req = max(req, 4)
    if pk == "salu" and "m0" in prod.wr and ck == "dma":
        req = max(req, 1)
    if pk == "vstore":
        d = prod.meta["data"]
        if d & cons.wr:
            req = max(req, 2)
    return req


def insert_nops(body, loop=False, pre=()):
    def run(seq, ctx):
        out = list(ctx)
        base = len(out)
        for ins in seq:
            if ins.kind != "label":
                dist = 0
                need = 0
                for p in reversed(out):
                    r = _required(p, ins)
                    if r > dist:
                        need = max(need, r - dist)
                    dist += _ws(p)
                    if dist > 24:
                        break
                while need > 0:
                    k = min(need, 16)
                    out.append(nop(k - 1))
                    need -= k
            out.append(ins)
        return out[base:]

    if not loop:
        return run(body, list(pre))
    o1 = run(body, list(pre))
    o2 = run(o1, o1[-40:])
    o3 = run(o2, o2[-40:])
    assert len(o3) == len(o2), "nop insertion did not converge"
    return o3


def finalize(body, loop=False, pre=()):
    b = insert_lgkm_waits(body, loop)
    b = insert_nops(b, loop, pre)
    return b


def text(body):
    out = []
    for i in body:
        if i.kind == "label":
            out.append(i.text)
        else:
            out.append("    " + i.text)
    return "\n".join(out)
```

```python
import struct
import sys

from asmlib import *

NAME = "standalone__swin_window_attn__vision"
X_BYTES = 56623104
WQKV_BYTES = 192 * 576 * 2
WO_BYTES = 192 * 192 * 2
WS_BYTES = 2 * 73728
ROWB = 384
IMROW = 147456
STRIP = 8 * IMROW
NB = 5
XWIN = 24576
PB = 0
XB = 16384
LDS_BYTES = XB + NB * XWIN
OOB = 0x40000000
NWIN = 9


def f32bits(x):
    return "0x%08x" % struct.unpack("<I", struct.pack("<f", x))[0]


CSCALE = (192 ** -0.5) * 1.4426950408889634


def srd(dst, ptr, nbytes):
    return [
        salu("s_mov_b32", S(dst), S(ptr), scc=False),
        salu("s_and_b32", S(dst + 1), S(ptr + 1), "0xffff"),
        salu("s_mov_b32", S(dst + 2), str(nbytes), scc=False),
        salu("s_mov_b32", S(dst + 3), "0x00020000", scc=False),
    ]


def rfl(dst, src):
    i = I(f"v_readfirstlane_b32 {dst}, {src}", [src], [dst], kind="valu")
    i.meta["rfl"] = True
    return i


def gen_fold():
    p = []
    e = p.append
    e(scmp("s_cmp_ge_u32", S(2), "72"))
    e(raw("s_cbranch_scc1 L_fold_end", ["scc"]))
    e(raw("s_load_dwordx4 s[4:7], s[0:1], 8", [S(0, 2)], [S(4, 4)]))
    e(raw("s_load_dwordx2 s[24:25], s[0:1], 40", [S(0, 2)], [S(24, 2)]))
    e(scmp("s_cmp_ge_u32", S(2), "36"))
    e(salu("s_cselect_b32", S(26), "1", "0", scc=False))
    e(salu("s_mul_i32", S(27), S(26), "36", scc=False))
    e(salu("s_sub_u32", S(27), S(2), S(27)))
    e(salu("s_mul_i32", S(28), S(27), "43", scc=False))
    e(salu("s_lshr_b32", S(28), S(28), "8"))
    e(salu("s_mul_i32", S(29), S(28), "6", scc=False))
    e(salu("s_sub_u32", S(29), S(27), S(29)))
    e(valu("v_and_b32", V(1), "31", V(0)))
    e(valu("v_lshrrev_b32", V(2), "5", V(0)))
    e(valu("v_and_b32", V(3), "0x13", V(1)))
    e(valu("v_and_b32", V(4), "4", V(1)))
    e(valu("v_lshlrev_b32", V(4), "1", V(4)))
    e(valu("v_or_b32", V(3), V(3), V(4)))
    e(valu("v_and_b32", V(4), "8", V(1)))
    e(valu("v_lshrrev_b32", V(4), "1", V(4)))
    e(valu("v_or_b32", V(3), V(3), V(4)))
    e(waitcnt(lgkm=0))
    p += srd(8, 4, WQKV_BYTES)
    p += srd(12, 6, WO_BYTES)
    p += srd(16, 24, WS_BYTES)
    e(salu("s_lshl_b32", S(30), S(28), "5"))
    e(valu("v_add_u32", V(5), S(30), V(3)))
    e(valu("v_mul_u32_u24", V(5), "1152", V(5)))
    e(valu("v_lshlrev_b32", V(6), "4", V(2)))
    e(valu("v_add_u32", V(5), V(5), V(6)))
    e(salu("s_mul_i32", S(31), S(26), "768", scc=False))
    e(valu("v_add_u32", V(5), S(31), V(5)))
    AF = [V(16 + 4 * k, 4) for k in range(12)]
    BF = [V(64 + 4 * k, 4) for k in range(12)]
    for ks in range(12):
        e(buf_load(AF[ks], V(5), S(8, 4), "0", ks * 32))
    e(salu("s_lshl_b32", S(30), S(29), "5"))
    e(valu("v_add_u32", V(7), S(30), V(3)))
    e(scmp("s_cmp_eq_u32", S(26), "1"))
    e(raw("s_cbranch_scc1 L_fold_wo", ["scc"]))
    e(valu("v_mul_u32_u24", V(8), "1152", V(7)))
    e(valu("v_add_u32", V(8), V(8), V(6)))
    e(valu("v_add_u32", V(8), "384", V(8)))
    for ks in range(12):
        e(buf_load(BF[ks], V(8), S(8, 4), "0", ks * 32))
    e(waitcnt(vm=0))
    e(raw("s_branch L_fold_mm"))
    e(label("L_fold_wo"))
    e(valu("v_mul_u32_u24", V(8), str(8 * 384), V(2)))
    e(valu("v_lshlrev_b32", V(9), "1", V(7)))
    e(valu("v_add_u32", V(8), V(8), V(9)))
    for half in range(2):
        for ks in range(6 * half, 6 * half + 6):
            e(salu("s_mov_b32", S(32), str(ks * 16 * 384), scc=False))
            for jj in range(8):
                e(buf_load(V(128 + (ks % 6) * 8 + jj), V(8), S(12, 4), S(32), jj * 384,
                           op="buffer_load_ushort"))
        e(waitcnt(vm=0))
        for ks in range(6 * half, 6 * half + 6):
            for k in range(4):
                b = 128 + (ks % 6) * 8 + 2 * k
                e(valu("v_lshl_or_b32", BF[ks][k], V(b + 1), "16", V(b)))
    e(label("L_fold_mm"))
    D = V(112, 16)
    for ks in range(12):
        e(mfma(D, AF[ks], BF[ks], D if ks else 0))
    for k in range(8):
        e(valu("v_cvt_pk_bf16_f32", V(16 + k), D[2 * k], D[2 * k + 1]))
    e(salu("s_mul_i32", S(33), S(29), "12", scc=False))
    e(salu("s_lshl_b32", S(34), S(28), "1"))
    e(salu("s_add_u32", S(33), S(33), S(34)))
    e(salu("s_lshl_b32", S(33), S(33), "10"))
    e(salu("s_mul_i32", S(34), S(26), "73728", scc=False))
    e(salu("s_add_u32", S(33), S(33), S(34)))
    e(valu("v_lshlrev_b32", V(10), "4", V(0)))
    e(buf_store(V(16, 4), V(10), S(16, 4), S(33), 0))
    e(buf_store(V(20, 4), V(10), S(16, 4), S(33), 1024))
    e(label("L_fold_end"))
    e(raw("s_endpgm"))
    return finalize(p)


SRD_X, SRD_O, SRD_W = S(8, 4), S(12, 4), S(16, 4)
sWAVE, sN, sW0 = S(20), S(21), S(22)
sBI, sDELTA = S(23), S(26)
sC, sNC = S(27), S(28)
sT1, sT2, sT3 = S(29), S(30), S(31)
sDMAW, sSTW, sDMABUF, sDBI = S(32), S(33), S(34), S(35)
sM0, sSO = S(36), S(37)
sTMP = S(38)
sXWIN = S(39)


def win_off(dst, w):
    return [
        salu("s_mul_hi_u32", sT1, w, "89478486", scc=False),
        salu("s_mul_i32", sT2, sT1, "48", scc=False),
        salu("s_sub_u32", sT2, w, sT2),
        salu("s_mul_i32", sT1, sT1, str(STRIP), scc=False),
        salu("s_mul_i32", sT2, sT2, "3072", scc=False),
        salu("s_add_u32", dst, sT1, sT2),
    ]


TA = [V(0, 16), V(16, 16)]
SAo, SAx = V(32, 16), V(48, 16)
Yo, Yx = V(64, 16), V(80, 16)
Tb = [V(96, 8), V(104, 8), V(112, 8)]
Xo = [V(120 + 4 * s, 4) for s in range(12)]
Xa = [[V(168, 4), V(172, 4)], [V(176, 4), V(180, 4)]]
Xa5 = [V(184, 4), V(188, 4)]
curO = [V(192 + k) for k in range(4)]
nxt = [V(196 + k) for k in range(4)]
pown, poth = V(200), V(201)
mx0, mx1, tt, nm = V(202), V(203), V(204), V(205)
sm = [V(206), V(207), V(208), V(209)]


def Mfrag(t, s):
    f = t * 12 + s
    return A(4 * f, 4) if f < 64 else V(224 + 4 * (f - 64), 4)


def xoff(s):
    return s & 3, (s >> 2) * 128


def T_tile(t):
    acc = TA[t & 1]
    return [mfma(acc, Mfrag(t, s), Xo[s], acc if s else 0) for s in range(12)]


def S_tile(t):
    out = []
    tb = Tb[t % 3]
    for u in range(2):
        own = Xa5[u] if t == 5 else Xo[2 * t + u]
        first = (t == 0 and u == 0)
        out.append(mfma(SAo, own, tb.sub(4 * u, 4), 0 if first else SAo))
        out.append(mfma(SAx, Xa[t & 1][u], tb.sub(4 * u, 4), 0 if first else SAx))
    return out


def cvtT(t):
    acc, tb = TA[t & 1], Tb[t % 3]
    return [valu("v_cvt_pk_bf16_f32", tb[k], acc[2 * k], acc[2 * k + 1]) for k in range(8)]


def ld_Xa(t):
    out = []
    for u in range(2):
        k, off = xoff(2 * t + u)
        out.append(ds_read128(Xa[t & 1][u], curO[k], off, must=True))
    return out


def ld_Xa5():
    out = []
    for u in range(2):
        k, off = xoff(10 + u)
        out.append(ds_read128(Xa5[u], nxt[k], off, must=True))
    return out


def ld_Xo(s):
    k, off = xoff(s)
    return ds_read128(Xo[s], nxt[k], off)


def sm_max():
    out = []
    for acc, m in ((SAo, mx0), (SAx, mx1)):
        out.append(valu("v_max3_f32", m, acc[0], acc[1], acc[2]))
        for k in range(3, 15, 2):
            out.append(valu("v_max3_f32", m, m, acc[k], acc[k + 1]))
        out.append(valu("v_max_f32", m, m, acc[15]))
    a, b = out[:8], out[8:]
    out = [x for pair in zip(a, b) for x in pair]
    out.append(valu("v_max_f32", mx0, mx0, mx1))
    out.append(valu("v_mov_b32", tt, mx0))
    out.append(permswap(mx0, tt))
    out.append(valu("v_max_f32", mx0, mx0, tt))
    out.append(valu("v_mul_f32", nm, sNC, mx0))
    return out


def sm_fma():
    return [valu("v_fma_f32", Y[r], SA_[r], sC, nm) for (Y, SA_) in ((Yo, SAo), (Yx, SAx)) for r in range(16)]


def sm_exp():
    return [valu("v_exp_f32", Y[r], Y[r]) for Y in (Yo, Yx) for r in range(16)]


def sm_sum():
    out = []
    ys = [Y[r] for Y in (Yo, Yx) for r in range(16)]
    for k, y in enumerate(ys):
        acc = sm[k & 3]
        if k < 4:
            out.append(valu("v_mov_b32", acc, y))
        else:
            out.append(valu("v_add_f32", acc, acc, y))
    return out


def sm_fin():
    return [
        valu("v_add_f32", sm[0], sm[0], sm[1]),
        valu("v_add_f32", sm[2], sm[2], sm[3]),
        valu("v_add_f32", sm[0], sm[0], sm[2]),
        valu("v_mov_b32", tt, sm[0]),
        permswap(sm[0], tt),
        valu("v_add_f32", sm[0], sm[0], tt),
        valu("v_rcp_f32", nm, sm[0]),
    ]


def sm_norm():
    out = []
    for Y, addr in ((Yo, pown), (Yx, poth)):
        for u in range(2):
            for r in range(8):
                out.append(valu("v_mul_f32", Y[8 * u + r], Y[8 * u + r], nm))
            for k in range(4):
                out.append(valu("v_cvt_pk_bf16_f32", Y[8 * u + k], Y[8 * u + 2 * k], Y[8 * u + 2 * k + 1]))
            out.append(ds_write128(addr, Y.sub(8 * u, 4), u * 1024))
    return out


def delta_update():
    return [
        salu("s_add_u32", sBI, sBI, "1"),
        scmp("s_cmp_eq_u32", sBI, str(NB)),
        salu("s_cselect_b32", sDELTA, str(-(NB - 1) * XWIN & 0xffffffff), sXWIN, scc=False),
        salu("s_cselect_b32", sBI, "0", sBI, scc=False),
    ]


def gen_S_body():
    spine = []
    spine += T_tile(0)
    spine += S_tile(5)
    spine += T_tile(1)
    spine += T_tile(2)
    spine += S_tile(0)
    spine += S_tile(1)
    spine += T_tile(3)
    spine += S_tile(2)
    spine += T_tile(4)
    spine += S_tile(3)
    spine += T_tile(5)
    spine += S_tile(4)
    s = Sched(spine)
    s.put(-1, delta_update())
    s.spread(cvtT(5), 0, 5)
    s.put(1, ld_Xa(0))
    s.put(16, ld_Xa5())
    s.put(17, ld_Xa(1))
    s.spread(cvtT(0), 16, 19)
    s.spread(sm_max(), 19, 24)
    s.spread(sm_fma(), 25, 37)
    s.spread([valu("v_add_u32", nxt[k], sDELTA, nxt[k]) for k in range(4)], 20, 23)
    s.spread(cvtT(1), 31, 36)
    s.spread(sm_exp(), 30, 58)
    s.spread(sm_sum(), 34, 62)
    s.spread(cvtT(2), 43, 48)
    s.put(44, ld_Xa(2))
    s.put(48, ld_Xa(3))
    s.spread(cvtT(3), 63, 68)
    s.put(64, ld_Xa(4))
    s.spread(sm_fin(), 63, 66)
    s.spread(sm_norm(), 68, 86)
    s.spread(cvtT(4), 79, 84)
    s.put(80, ld_Xa(5))
    for k in range(12):
        if k == 8:
            s.put(93, ld_Xo(k))
        elif k == 9:
            s.put(95, ld_Xo(k))
        else:
            s.put(80 + k, ld_Xo(k))
    s.spread([valu("v_add_u32", curO[k], sDELTA, curO[k]) for k in range(4)], 88, 91)
    s.put(92, valu("v_xor_b32", pown, "0x2000", pown), valu("v_xor_b32", poth, "0x2000", poth))
    return s


def gen_S_tail():
    p = []
    p += cvtT(5)
    p += S_tile(5)
    p += sm_max() + sm_fma() + sm_exp() + sm_sum() + sm_fin() + sm_norm()
    return p


Wf = [[A((td * 12 + s) * 4, 4) for s in range(12)] for td in range(3)]
Xr = [A(144 + 4 * k, 4) for k in range(8)]
Pf = [[A(176 + (ib * 4 + ks) * 4, 4) for ks in range(4)] for ib in range(2)]
UA = [[V(td * 32 + jb * 16, 16) for jb in range(2)] for td in range(3)]
Ub = [[V(96 + td * 16 + jb * 8, 8) for jb in range(2)] for td in range(3)]
OA = [[V(144 + b * 32 + ib * 16, 16) for ib in range(2)] for b in range(2)]
ob = [V(208, 8), V(216, 8)]
cur = [V(224 + k) for k in range(4)]
paddr = V(228)
dmaoff = [V(229), V(230), V(231)]
stoff = [V(232), V(233)]


def O_tile(td):
    out = []
    for ib in range(2):
        acc = OA[td & 1][ib]
        for ks in range(4):
            jb, u = ks >> 1, ks & 1
            out.append(mfma(acc, Ub[td][jb].sub(4 * u, 4), Pf[ib][ks], acc if ks else 0))
    return out


def U01():
    out = []
    for s in range(12):
        for jb in range(2):
            x = Xr[(2 * s + jb) % 8]
            for td in range(2):
                acc = UA[td][jb]
                out.append(mfma(acc, x, Wf[td][s], acc if s else 0))
    return out


def U2(f0, f1):
    out = []
    for f in range(f0, f1):
        s, jb = f >> 1, f & 1
        acc = UA[2][jb]
        out.append(mfma(acc, Xr[(24 + f) % 8], Wf[2][s], acc if s else 0))
    return out


def ld_X(u):
    f = u % 24
    s, jb = f >> 1, f & 1
    k, off = xoff(s)
    return ds_read128(Xr[u % 8], cur[k], off + jb * 12288, must=True)


def ld_P():
    return [ds_read128(Pf[ib][ks], paddr, (ib * 4 + ks) * 1024, must=True) for ib in range(2) for ks in range(4)]


def cvtU(td, jb):
    acc, dst = UA[td][jb], Ub[td][jb]
    return [valu("v_cvt_pk_bf16_f32", dst[k], acc[2 * k], acc[2 * k + 1]) for k in range(8)]


def cvtO(td, ib):
    acc, dst = OA[td & 1][ib], ob[ib]
    out = [valu("v_cvt_pk_bf16_f32", dst[k], acc[2 * k], acc[2 * k + 1]) for k in range(8)]
    out.append(buf_store(dst.sub(0, 4), stoff[ib], SRD_O, sSTW, td * 64))
    out.append(buf_store(dst.sub(4, 4), stoff[ib], SRD_O, sSTW, td * 64 + 32))
    return out


def dma_window(woff, bufbase):
    out = []
    for k in range(4):
        out.append(salu("s_add_u32", sM0, bufbase, str(2 * k * 3072)))
        out.append(salu("s_add_u32", sSO, woff, str(2 * k * IMROW)))
        out.append(salu("s_mov_b32", "m0", sM0, scc=False))
        for b in range(3):
            out.append(buf_dma(dmaoff[b], SRD_X, sSO, b * 1024))
    return out


def o_scalar_update():
    p = []
    p.append(salu("s_add_u32", sT3, sW0, sN))
    p.append(salu("s_sub_u32", sT3, sT3, "2"))
    p += win_off(sSTW, sT3)
    p.append(scmp("s_cmp_lt_u32", sN, "2"))
    p.append(salu("s_cselect_b32", sSTW, str(OOB), sSTW, scc=False))
    p.append(salu("s_add_u32", sT3, sW0, sN))
    p.append(salu("s_add_u32", sT3, sT3, str(NB - 1)))
    p += win_off(sDMAW, sT3)
    p.append(salu("s_add_u32", sDMAW, sDMAW, sTMP))
    p.append(scmp("s_cmp_gt_u32", sN, str(NWIN - NB)))
    p.append(salu("s_cselect_b32", sDMAW, str(OOB), sDMAW, scc=False))
    return p


def dma_buf_update():
    return [
        salu("s_add_u32", sDBI, sDBI, "1"),
        salu("s_add_u32", sDMABUF, sDMABUF, str(XWIN)),
        scmp("s_cmp_eq_u32", sDBI, str(NB)),
        salu("s_cselect_b32", sDBI, "0", sDBI, scc=False),
        salu("s_cselect_b32", sT1, str(NB * XWIN), "0", scc=False),
        salu("s_sub_u32", sDMABUF, sDMABUF, sT1),
    ]


def gen_O_body():
    spine = []
    spine += U2(18, 24)
    spine += O_tile(0)
    spine += O_tile(1)
    spine += O_tile(2)
    spine += U01()
    spine += U2(0, 18)
    s = Sched(spine)
    s.put(-1, ld_P())
    s.put(0, valu("v_xor_b32", paddr, "0x2000", paddr))
    s.spread(o_scalar_update(), 0, 5)
    for u in range(8):
        s.put(6 + u, ld_X(u))
    for u in range(8, 24):
        s.put(31 + 2 * (u - 8), ld_X(u))
    for f in range(8):
        s.put(63 + 2 * f, ld_X(24 + f))
    for f in range(16):
        s.put(78 + f, ld_X(32 + f))
    s.spread(cvtO(0, 0), 13, 19)
    s.spread(cvtO(0, 1), 18, 24)
    s.spread(cvtU(0, 0) + cvtU(0, 1), 14, 25)
    s.spread(cvtU(1, 0) + cvtU(1, 1), 22, 30)
    s.spread(cvtO(1, 0) + cvtO(1, 1), 32, 40)
    s.spread(cvtO(2, 0) + cvtO(2, 1), 41, 49)
    s.spread(cvtU(2, 0) + cvtU(2, 1), 50, 60)
    s.spread(dma_window(sDMAW, sDMABUF), 50, 77)
    s.put(78, dma_buf_update())
    s.put(94, delta_update())
    s.put(95, [valu("v_add_u32", cur[k], sDELTA, cur[k]) for k in range(4)])
    return s


def gen_O_tail1():
    spine = U2(18, 24) + O_tile(0) + O_tile(1) + O_tile(2)
    s = Sched(spine)
    s.put(-1, ld_P())
    s.put(0, valu("v_xor_b32", paddr, "0x2000", paddr))
    s.spread(o_scalar_update(), 0, 5)
    s.spread(cvtO(0, 0), 13, 19)
    s.spread(cvtO(0, 1), 18, 24)
    s.spread(cvtU(0, 0) + cvtU(0, 1), 14, 25)
    s.spread(cvtU(1, 0) + cvtU(1, 1), 22, 29)
    p = s.linear()
    p += cvtO(1, 0) + cvtO(1, 1) + cvtU(2, 0) + cvtU(2, 1) + cvtO(2, 0) + cvtO(2, 1)
    return p


def gen_O_tail2():
    spine = O_tile(0) + O_tile(1) + O_tile(2)
    s = Sched(spine)
    s.put(-1, ld_P())
    s.put(-1, o_scalar_update())
    s.spread(cvtO(0, 0), 7, 13)
    s.spread(cvtO(0, 1), 12, 18)
    p = s.linear()
    p += cvtO(1, 0) + cvtO(1, 1) + cvtO(2, 0) + cvtO(2, 1)
    return p


def gen_main():
    out = []
    p = []
    e = p.append
    e(scmp("s_cmp_ge_u32", S(2), "256"))
    e(raw("s_cbranch_scc1 L_end", ["scc"]))
    e(raw("s_load_dwordx2 s[4:5], s[0:1], 0", [S(0, 2)], [S(4, 2)]))
    e(raw("s_load_dwordx2 s[6:7], s[0:1], 24", [S(0, 2)], [S(6, 2)]))
    e(raw("s_load_dwordx2 s[24:25], s[0:1], 40", [S(0, 2)], [S(24, 2)]))
    L, H, L31, R_, T1, T2 = V(240), V(241), V(242), V(243), V(244), V(245)
    BK = [V(246 + k) for k in range(4)]
    e(valu("v_lshrrev_b32", T1, "6", V(0)))
    e(valu("v_and_b32", L, "63", V(0)))
    e(rfl(sWAVE, T1))
    e(valu("v_lshrrev_b32", H, "5", L))
    e(valu("v_and_b32", L31, "31", L))
    e(valu("v_lshrrev_b32", R_, "1", L31))
    e(valu("v_and_b32", R_, "7", R_))
    e(valu("v_mul_u32_u24", T1, str(ROWB), L31))
    for k in range(4):
        e(valu("v_add_u32", T2, str(2 * k), H))
        e(valu("v_xor_b32", T2, T2, R_))
        e(valu("v_lshlrev_b32", T2, "4", T2))
        e(valu("v_add_u32", BK[k], T1, T2))
        e(valu("v_add_u32", BK[k], str(XB), BK[k]))
    e(salu("s_mul_i32", sW0, S(2), str(NWIN), scc=False))
    e(salu("s_mov_b32", sN, "0", scc=False))
    e(salu("s_mov_b32", sBI, "0", scc=False))
    e(salu("s_mov_b32", sXWIN, str(XWIN), scc=False))
    e(salu("s_mov_b32", sC, f32bits(CSCALE), scc=False))
    e(salu("s_mov_b32", sNC, f32bits(-CSCALE), scc=False))
    e(waitcnt(lgkm=0))
    p += srd(8, 4, X_BYTES)
    p += srd(12, 6, X_BYTES)
    p += srd(16, 24, WS_BYTES)
    e(scmp("s_cmp_ge_u32", sWAVE, "2"))
    e(raw("s_cbranch_scc1 L_owave", ["scc"]))
    out += finalize(p)

    p = []
    e = p.append
    LANE16 = V(210)
    e(valu("v_lshlrev_b32", LANE16, "4", L))
    for f in range(72):
        if f % 4 == 0:
            e(salu("s_mov_b32", sT1, str(f * 1024), scc=False))
        e(buf_load(Mfrag(f // 12, f % 12), LANE16, SRD_W, sT1, (f % 4) * 1024))
        if f == 39:
            e(waitcnt(vm=30))
    pre = []
    e2 = pre.append
    e2(salu("s_mul_i32", sT2, sWAVE, "12288", scc=False))
    e2(salu("s_sub_u32", sT3, "12288", sT2))
    for k in range(4):
        e2(valu("v_add_u32", nxt[k], sT2, BK[k]))
        e2(valu("v_add_u32", curO[k], sT3, BK[k]))
    e2(salu("s_mul_i32", sT2, sWAVE, str(4096 + 2048), scc=False))
    e2(salu("s_add_u32", sT2, sT2, str(PB + 8192)))
    e2(valu("v_lshlrev_b32", V(211), "4", L))
    e2(valu("v_add_u32", pown, sT2, V(211)))
    e2(salu("s_mul_i32", sT2, sWAVE, str(4096 - 2048), scc=False))
    e2(salu("s_add_u32", sT2, sT2, str(PB + 8192 + 2048)))
    e2(valu("v_add_u32", poth, sT2, V(211)))
    p = pre + p
    e = p.append
    e(waitcnt(vm=0))
    e(barrier())
    for k in range(12):
        e(ld_Xo(k))
    e(waitcnt(lgkm=0))
    out += finalize(p)
    sb = gen_S_body()
    body = [label("L_s_loop")] + sb.linear()
    body += [barrier(),
             salu("s_add_u32", sN, sN, "1"),
             scmp("s_cmp_lt_u32", sN, str(NWIN)),
             raw("s_cbranch_scc1 L_s_loop", ["scc"])]
    print("S gaps:", sb.report(), file=sys.stderr)
    fb = finalize(body, loop=True)
    out += fb
    tail = gen_S_tail() + [barrier(), raw("s_endpgm")]
    out += finalize(tail, pre=fb[-40:])

    p = []
    e = p.append
    e(label("L_owave"))
    e(salu("s_sub_u32", sWAVE, sWAVE, "2"))
    for k in range(4):
        e(valu("v_mov_b32", cur[k], BK[k]))
    e(valu("v_lshlrev_b32", paddr, "4", L))
    e(salu("s_lshl_b32", sT1, sWAVE, "2"))
    for b in range(3):
        e(valu("v_add_u32", T1, str(64 * b), L))
        e(valu("v_mul_u32_u24", T1, "2731", T1))
        e(valu("v_lshrrev_b32", T1, "17", T1))
        e(valu("v_or_b32", T1, sT1, T1))
        e(valu("v_xor_b32", T1, T1, L))
        e(valu("v_lshlrev_b32", dmaoff[b], "4", T1))
    e(valu("v_lshrrev_b32", T1, "3", L31))
    e(salu("s_mov_b32", sT2, str(IMROW), scc=False))
    e(valu("v_mul_lo_u32", T1, T1, sT2))
    e(valu("v_and_b32", T2, "7", L))
    e(valu("v_mul_u32_u24", T2, str(ROWB), T2))
    e(valu("v_add_u32", T1, T1, T2))
    e(valu("v_lshlrev_b32", T2, "4", H))
    e(valu("v_add_u32", T1, T1, T2))
    e(salu("s_mul_i32", sT2, sWAVE, "192", scc=False))
    e(valu("v_add_u32", stoff[0], sT2, T1))
    e(valu("v_add_u32", stoff[1], str(4 * IMROW), stoff[0]))
    e(salu("s_mul_i32", sTMP, sWAVE, str(IMROW), scc=False))
    e(salu("s_mul_i32", sDMABUF, sWAVE, "3072", scc=False))
    e(salu("s_add_u32", sDMABUF, sDMABUF, str(XB)))
    e(salu("s_mov_b32", sDBI, "0", scc=False))
    LANE16 = V(234)
    e(valu("v_lshlrev_b32", LANE16, "4", L))

    def pro_dma(k):
        q = [salu("s_add_u32", sT3, sW0, str(k))]
        q += win_off(sDMAW, sT3)
        q.append(salu("s_add_u32", sDMAW, sDMAW, sTMP))
        q += dma_window(sDMAW, sDMABUF)
        q += dma_buf_update()
        return q

    p += pro_dma(0)
    e(salu("s_mul_i32", sT3, sWAVE, str(36 * 1024), scc=False))
    e(salu("s_add_u32", sT3, sT3, "73728"))
    for f in range(36):
        if f % 4 == 0:
            e(salu("s_add_u32", sT1, sT3, str(f * 1024)))
        e(buf_load(Wf[f // 12][f % 12], LANE16, SRD_W, sT1, (f % 4) * 1024))
    p += pro_dma(1)
    e(waitcnt(vm=36))
    for k in range(2, NB - 1):
        p += pro_dma(k)
    e(waitcnt(vm=12 * (NB - 3)))
    e(barrier())
    out += finalize(p)
    ob_ = gen_O_body()
    body = [label("L_o_loop")] + ob_.linear()
    body += [waitcnt(vm=36), barrier(),
             salu("s_add_u32", sN, sN, "1"),
             scmp("s_cmp_lt_u32", sN, str(NWIN)),
             raw("s_cbranch_scc1 L_o_loop", ["scc"])]
    print("O gaps:", ob_.report(), file=sys.stderr)
    fb = finalize(body, loop=True)
    out += fb
    t1 = gen_O_tail1() + [barrier(), salu("s_add_u32", sN, sN, "1")]
    t1 = finalize(t1, pre=fb[-40:])
    out += t1
    t2 = gen_O_tail2() + [label("L_end"), raw("s_endpgm")]
    out += finalize(t2, pre=t1[-40:])
    return out


HEADER = f"""; Kernarg layout for this problem (48 bytes, ptrs only, base s[0:1]):
; @launch kernel=swin_fold_kernel grid=(72,1,1) block=(64,1,1) lds=0
; @launch kernel={NAME}_kernel grid=(256,1,1) block=(256,1,1) lds={LDS_BYTES}
.amdgcn_target "amdgcn-amd-amdhsa--gfx950"
.text
"""


def kd(name, vgpr, sgpr, accum):
    return f""".amdhsa_kernel {name}
  .amdhsa_next_free_vgpr {vgpr}
  .amdhsa_next_free_sgpr {sgpr}
  .amdhsa_accum_offset {accum}
  .amdhsa_group_segment_fixed_size 0
  .amdhsa_kernarg_size 48
  .amdhsa_user_sgpr_count 2
  .amdhsa_user_sgpr_kernarg_segment_ptr 1
  .amdhsa_system_sgpr_workgroup_id_x 1
.end_amdhsa_kernel
"""


def main():
    s = HEADER
    s += f".globl {NAME}_kernel\n.p2align 8\n.type {NAME}_kernel,@function\n{NAME}_kernel:\n"
    s += text(gen_main()) + "\n"
    s += ".globl swin_fold_kernel\n.p2align 8\n.type swin_fold_kernel,@function\nswin_fold_kernel:\n"
    s += text(gen_fold()) + "\n"
    s += '.section .rodata,"a"\n.p2align 6\n'
    s += kd(f"{NAME}_kernel", 512, 64, 256)
    s += ".p2align 6\n"
    s += kd("swin_fold_kernel", 184, 48, 184)
    outp = sys.argv[1] if len(sys.argv) > 1 else f"cdna_kernels/{NAME}.s"
    open(outp, "w").write(s)


if __name__ == "__main__":
    main()
```

```python
import struct
import sys

from asmlib import *

NAME = "standalone__swin_window_attn__vision"
X_BYTES = 56623104
WQKV_BYTES = 192 * 576 * 2
WO_BYTES = 192 * 192 * 2
WS_BYTES = 2 * 73728
ROWB = 384
IMROW = 147456
STRIP = 8 * IMROW
NB = 5
XWIN = 24576
PB = 0
OSB = 16384
XB = OSB + 2 * 12288
LDS_BYTES = XB + NB * XWIN
OOB = 0x40000000
NWIN = 9


def f32bits(x):
    return "0x%08x" % struct.unpack("<I", struct.pack("<f", x))[0]


CSCALE = (192 ** -0.5) * 1.4426950408889634


def srd(dst, ptr, nbytes):
    return [
        salu("s_mov_b32", S(dst), S(ptr), scc=False),
        salu("s_and_b32", S(dst + 1), S(ptr + 1), "0xffff"),
        salu("s_mov_b32", S(dst + 2), str(nbytes), scc=False),
        salu("s_mov_b32", S(dst + 3), "0x00020000", scc=False),
    ]


def rfl(dst, src):
    i = I(f"v_readfirstlane_b32 {dst}, {src}", [src], [dst], kind="valu")
    i.meta["rfl"] = True
    return i


def gen_fold():
    p = []
    e = p.append
    e(scmp("s_cmp_ge_u32", S(2), "72"))
    e(raw("s_cbranch_scc1 L_fold_end", ["scc"]))
    e(raw("s_load_dwordx4 s[4:7], s[0:1], 8", [S(0, 2)], [S(4, 4)]))
    e(raw("s_load_dwordx2 s[24:25], s[0:1], 40", [S(0, 2)], [S(24, 2)]))
    e(scmp("s_cmp_ge_u32", S(2), "36"))
    e(salu("s_cselect_b32", S(26), "1", "0", scc=False))
    e(salu("s_mul_i32", S(27), S(26), "36", scc=False))
    e(salu("s_sub_u32", S(27), S(2), S(27)))
    e(salu("s_mul_i32", S(28), S(27), "43", scc=False))
    e(salu("s_lshr_b32", S(28), S(28), "8"))
    e(salu("s_mul_i32", S(29), S(28), "6", scc=False))
    e(salu("s_sub_u32", S(29), S(27), S(29)))
    e(valu("v_and_b32", V(1), "31", V(0)))
    e(valu("v_lshrrev_b32", V(2), "5", V(0)))
    e(valu("v_and_b32", V(3), "0x13", V(1)))
    e(valu("v_and_b32", V(4), "4", V(1)))
    e(valu("v_lshlrev_b32", V(4), "1", V(4)))
    e(valu("v_or_b32", V(3), V(3), V(4)))
    e(valu("v_and_b32", V(4), "8", V(1)))
    e(valu("v_lshrrev_b32", V(4), "1", V(4)))
    e(valu("v_or_b32", V(3), V(3), V(4)))
    e(waitcnt(lgkm=0))
    p += srd(8, 4, WQKV_BYTES)
    p += srd(12, 6, WO_BYTES)
    p += srd(16, 24, WS_BYTES)
    e(salu("s_lshl_b32", S(30), S(28), "5"))
    e(valu("v_add_u32", V(5), S(30), V(3)))
    e(valu("v_mul_u32_u24", V(5), "1152", V(5)))
    e(valu("v_lshlrev_b32", V(6), "4", V(2)))
    e(valu("v_add_u32", V(5), V(5), V(6)))
    e(salu("s_mul_i32", S(31), S(26), "768", scc=False))
    e(valu("v_add_u32", V(5), S(31), V(5)))
    AF = [V(16 + 4 * k, 4) for k in range(12)]
    BF = [V(64 + 4 * k, 4) for k in range(12)]
    for ks in range(12):
        e(buf_load(AF[ks], V(5), S(8, 4), "0", ks * 32))
    e(salu("s_lshl_b32", S(30), S(29), "5"))
    e(valu("v_add_u32", V(7), S(30), V(3)))
    e(scmp("s_cmp_eq_u32", S(26), "1"))
    e(raw("s_cbranch_scc1 L_fold_wo", ["scc"]))
    e(valu("v_mul_u32_u24", V(8), "1152", V(7)))
    e(valu("v_add_u32", V(8), V(8), V(6)))
    e(valu("v_add_u32", V(8), "384", V(8)))
    for ks in range(12):
        e(buf_load(BF[ks], V(8), S(8, 4), "0", ks * 32))
    e(waitcnt(vm=0))
    e(raw("s_branch L_fold_mm"))
    e(label("L_fold_wo"))
    e(valu("v_mul_u32_u24", V(8), str(8 * 384), V(2)))
    e(valu("v_lshlrev_b32", V(9), "1", V(7)))
    e(valu("v_add_u32", V(8), V(8), V(9)))
    for half in range(2):
        for ks in range(6 * half, 6 * half + 6):
            e(salu("s_mov_b32", S(32), str(ks * 16 * 384), scc=False))
            for jj in range(8):
                e(buf_load(V(128 + (ks % 6) * 8 + jj), V(8), S(12, 4), S(32), jj * 384,
                           op="buffer_load_ushort"))
        e(waitcnt(vm=0))
        for ks in range(6 * half, 6 * half + 6):
            for k in range(4):
                b = 128 + (ks % 6) * 8 + 2 * k
                e(valu("v_lshl_or_b32", BF[ks][k], V(b + 1), "16", V(b)))
    e(label("L_fold_mm"))
    D = V(112, 16)
    for ks in range(12):
        e(mfma(D, AF[ks], BF[ks], D if ks else 0))
    for k in range(8):
        e(valu("v_cvt_pk_bf16_f32", V(16 + k), D[2 * k], D[2 * k + 1]))
    e(salu("s_mul_i32", S(33), S(29), "12", scc=False))
    e(salu("s_lshl_b32", S(34), S(28), "1"))
    e(salu("s_add_u32", S(33), S(33), S(34)))
    e(salu("s_lshl_b32", S(33), S(33), "10"))
    e(salu("s_mul_i32", S(34), S(26), "73728", scc=False))
    e(salu("s_add_u32", S(33), S(33), S(34)))
    e(valu("v_lshlrev_b32", V(10), "4", V(0)))
    e(buf_store(V(16, 4), V(10), S(16, 4), S(33), 0))
    e(buf_store(V(20, 4), V(10), S(16, 4), S(33), 1024))
    e(label("L_fold_end"))
    e(raw("s_endpgm"))
    return finalize(p)


SRD_X, SRD_O, SRD_W = S(8, 4), S(12, 4), S(16, 4)
sWAVE, sN, sW0 = S(20), S(21), S(22)
sBI, sDELTA = S(23), S(26)
sC, sNC = S(27), S(28)
sT1, sT2, sT3 = S(29), S(30), S(31)
sDMAW, sSTW, sDMABUF, sDBI = S(32), S(33), S(34), S(35)
sM0, sSO = S(36), S(37)
sTMP = S(38)
sXWIN = S(39)


import os
DIAG = int(os.environ.get("DIAG", "0"))
sST = S(40, 2)
sSTI = S(42)
SRD_D = S(44, 4)


def stamp(vreg, op="s_memtime"):
    if not DIAG:
        return []
    return [
        raw(f"{op} s[40:41]", [], [sST]),
        waitcnt(lgkm=0),
        valu("v_mov_b32", V(vreg.base + 3), S(40)),
        raw(f"v_cmp_eq_u32 vcc, s42, v{vreg.base + 2}", [sSTI, V(vreg.base + 2)], ["vcc"], kind="valu"),
        nop(2),
        raw(f"v_cndmask_b32 {vreg}, {vreg}, v{vreg.base + 3}, vcc", [vreg, V(vreg.base + 3), "vcc"], [vreg], kind="valu"),
        salu("s_add_u32", sSTI, sSTI, "1"),
    ]


def stamp_store(vreg, vtmp):
    if not DIAG:
        return []
    return [
        raw(f"v_mbcnt_lo_u32_b32 {vtmp}, -1, 0", [], [vtmp], kind="valu"),
        raw(f"v_mbcnt_hi_u32_b32 {vtmp}, -1, {vtmp}", [vtmp], [vtmp], kind="valu"),
        valu("v_lshlrev_b32", vtmp, "2", vtmp),
        salu("s_lshl_b32", sT1, S(2), "2"),
        salu("s_add_u32", sT1, sT1, S(43)),
        salu("s_lshl_b32", sT1, sT1, "8"),
        salu("s_add_u32", sT1, sT1, str(1 << 20)),
        buf_store(vreg, vtmp, SRD_D, sT1, 0, op="buffer_store_dword"),
    ]


def win_off(dst, w):
    return [
        salu("s_mul_hi_u32", sT1, w, "89478486", scc=False),
        salu("s_mul_i32", sT2, sT1, "48", scc=False),
        salu("s_sub_u32", sT2, w, sT2),
        salu("s_mul_i32", sT1, sT1, str(STRIP), scc=False),
        salu("s_mul_i32", sT2, sT2, "3072", scc=False),
        salu("s_add_u32", dst, sT1, sT2),
    ]


TA = [V(0, 16), V(16, 16)]
SAo, SAx = V(32, 16), V(48, 16)
Yo, Yx = V(64, 16), V(80, 16)
Tb = [V(96, 8), V(104, 8), V(112, 8)]
Xo = [V(120 + 4 * s, 4) for s in range(12)]
Xa = [[V(168, 4), V(172, 4)], [V(176, 4), V(180, 4)]]
Xa5 = [V(184, 4), V(188, 4)]
curO = [V(192 + k) for k in range(4)]
nxt = [V(196 + k) for k in range(4)]
pown, poth = V(200), V(201)
mx0, mx1, tt, nm = V(202), V(203), V(204), V(205)
sm = [V(206), V(207), V(208), V(209)]


def Mfrag(t, s):
    f = t * 12 + s
    return A(4 * f, 4) if f < 64 else V(224 + 4 * (f - 64), 4)


def xoff(s):
    return s & 3, (s >> 2) * 128


def T_tile(t):
    acc = TA[t & 1]
    return [mfma(acc, Mfrag(t, s), Xo[s], acc if s else 0) for s in range(12)]


def S_tile(t):
    out = []
    tb = Tb[t % 3]
    for u in range(2):
        own = Xa5[u] if t == 5 else Xo[2 * t + u]
        first = (t == 0 and u == 0)
        out.append(mfma(SAo, own, tb.sub(4 * u, 4), 0 if first else SAo))
        out.append(mfma(SAx, Xa[t & 1][u], tb.sub(4 * u, 4), 0 if first else SAx))
    return out


def cvtT(t):
    acc, tb = TA[t & 1], Tb[t % 3]
    return [valu("v_cvt_pk_bf16_f32", tb[k], acc[2 * k], acc[2 * k + 1]) for k in range(8)]


def ld_Xa(t):
    out = []
    for u in range(2):
        k, off = xoff(2 * t + u)
        out.append(ds_read128(Xa[t & 1][u], curO[k], off, must=True))
    return out


def ld_Xa5():
    out = []
    for u in range(2):
        k, off = xoff(10 + u)
        out.append(ds_read128(Xa5[u], nxt[k], off, must=True))
    return out


def ld_Xo(s):
    k, off = xoff(s)
    return ds_read128(Xo[s], nxt[k], off)


def sm_max():
    out = []
    for acc, m in ((SAo, mx0), (SAx, mx1)):
        out.append(valu("v_max3_f32", m, acc[0], acc[1], acc[2]))
        for k in range(3, 15, 2):
            out.append(valu("v_max3_f32", m, m, acc[k], acc[k + 1]))
        out.append(valu("v_max_f32", m, m, acc[15]))
    a, b = out[:8], out[8:]
    out = [x for pair in zip(a, b) for x in pair]
    out.append(valu("v_max_f32", mx0, mx0, mx1))
    out.append(valu("v_mov_b32", tt, mx0))
    out.append(permswap(mx0, tt))
    out.append(valu("v_max_f32", mx0, mx0, tt))
    out.append(valu("v_mul_f32", nm, sNC, mx0))
    return out


def sm_fma():
    return [valu("v_fma_f32", Y[r], SA_[r], sC, nm) for (Y, SA_) in ((Yo, SAo), (Yx, SAx)) for r in range(16)]


def sm_exp():
    return [valu("v_exp_f32", Y[r], Y[r]) for Y in (Yo, Yx) for r in range(16)]


def sm_sum():
    out = []
    ys = [Y[r] for Y in (Yo, Yx) for r in range(16)]
    for k, y in enumerate(ys):
        acc = sm[k & 3]
        if k < 4:
            out.append(valu("v_mov_b32", acc, y))
        else:
            out.append(valu("v_add_f32", acc, acc, y))
    return out


def sm_fin():
    return [
        valu("v_add_f32", sm[0], sm[0], sm[1]),
        valu("v_add_f32", sm[2], sm[2], sm[3]),
        valu("v_add_f32", sm[0], sm[0], sm[2]),
        valu("v_mov_b32", tt, sm[0]),
        permswap(sm[0], tt),
        valu("v_add_f32", sm[0], sm[0], tt),
        valu("v_rcp_f32", nm, sm[0]),
    ]


def sm_norm():
    out = []
    for Y, addr in ((Yo, pown), (Yx, poth)):
        for u in range(2):
            for r in range(8):
                out.append(valu("v_mul_f32", Y[8 * u + r], Y[8 * u + r], nm))
            for k in range(4):
                out.append(valu("v_cvt_pk_bf16_f32", Y[8 * u + k], Y[8 * u + 2 * k], Y[8 * u + 2 * k + 1]))
            out.append(ds_write128(addr, Y.sub(8 * u, 4), u * 1024))
    return out


def delta_update():
    return [
        salu("s_add_u32", sBI, sBI, "1"),
        scmp("s_cmp_eq_u32", sBI, str(NB)),
        salu("s_cselect_b32", sDELTA, str(-(NB - 1) * XWIN & 0xffffffff), sXWIN, scc=False),
        salu("s_cselect_b32", sBI, "0", sBI, scc=False),
    ]


def gen_S_body():
    spine = []
    spine += T_tile(0)
    spine += S_tile(5)
    spine += T_tile(1)
    spine += T_tile(2)
    spine += S_tile(0)
    spine += S_tile(1)
    spine += T_tile(3)
    spine += S_tile(2)
    spine += T_tile(4)
    spine += S_tile(3)
    spine += T_tile(5)
    spine += S_tile(4)
    s = Sched(spine)
    s.put(-1, delta_update())
    for t, g in enumerate((-1, 15, 27, 47, 63, 79)):
        s.put(g, waitcnt(vm=72 - 12 * (t + 1)))
    s.spread(cvtT(5), 0, 5)
    s.put(1, ld_Xa(0))
    s.put(16, ld_Xa5())
    s.put(17, ld_Xa(1))
    s.spread(cvtT(0), 17, 20)
    s.spread(sm_max(), 19, 24)
    s.spread(sm_fma(), 25, 37)
    s.spread([valu("v_add_u32", nxt[k], sDELTA, nxt[k]) for k in range(4)], 20, 23)
    s.spread(cvtT(1), 31, 36)
    s.spread(sm_exp(), 30, 58)
    s.spread(sm_sum(), 34, 62)
    s.spread(cvtT(2), 43, 48)
    s.put(44, ld_Xa(2))
    s.put(48, ld_Xa(3))
    s.spread(cvtT(3), 63, 68)
    s.put(64, ld_Xa(4))
    s.spread(sm_fin(), 63, 66)
    s.spread(sm_norm(), 68, 86)
    s.spread(cvtT(4), 79, 84)
    s.put(80, ld_Xa(5))
    for k in range(12):
        if k == 8:
            s.put(93, ld_Xo(k))
        elif k == 9:
            s.put(95, ld_Xo(k))
        else:
            s.put(80 + k, ld_Xo(k))
    s.spread([valu("v_add_u32", curO[k], sDELTA, curO[k]) for k in range(4)], 88, 91)
    s.put(92, valu("v_xor_b32", pown, "0x2000", pown), valu("v_xor_b32", poth, "0x2000", poth))
    return s


def gen_S_tail():
    p = []
    p += cvtT(5)
    p += S_tile(5)
    p += sm_max() + sm_fma() + sm_exp() + sm_sum() + sm_fin() + sm_norm()
    return p


Wf = [[A((td * 12 + s) * 4, 4) for s in range(12)] for td in range(3)]
Xr = [A(144 + 4 * k, 4) for k in range(8)]
Pf = [[A(176 + (ib * 4 + ks) * 4, 4) for ks in range(4)] for ib in range(2)]
UA = [[V(td * 32 + jb * 16, 16) for jb in range(2)] for td in range(3)]
Ub = [[V(96 + td * 16 + jb * 8, 8) for jb in range(2)] for td in range(3)]
OA = [[V(144 + b * 32 + ib * 16, 16) for ib in range(2)] for b in range(2)]
ob = [V(208, 8), V(216, 8)]
cur = [V(224 + k) for k in range(4)]
paddr = V(228)
dmaoff = [V(229), V(230), V(231)]
stoff = [V(232), V(233), V(234)]
oswr = [V(235), V(240)]
osrd = [V(241), V(242), V(243)]
Or = [A(208 + 4 * k, 4) for k in range(12)]


def O_tile(td):
    out = []
    for ib in range(2):
        acc = OA[td & 1][ib]
        for ks in range(4):
            jb, u = ks >> 1, ks & 1
            out.append(mfma(acc, Ub[td][jb].sub(4 * u, 4), Pf[ib][ks], acc if ks else 0))
    return out


def U01():
    out = []
    for s in range(12):
        for jb in range(2):
            x = Xr[(2 * s + jb) % 8]
            for td in range(2):
                acc = UA[td][jb]
                out.append(mfma(acc, x, Wf[td][s], acc if s else 0))
    return out


def U2(f0, f1):
    out = []
    for f in range(f0, f1):
        s, jb = f >> 1, f & 1
        acc = UA[2][jb]
        out.append(mfma(acc, Xr[(24 + f) % 8], Wf[2][s], acc if s else 0))
    return out


def ld_X(u):
    f = u % 24
    s, jb = f >> 1, f & 1
    k, off = xoff(s)
    return ds_read128(Xr[u % 8], cur[k], off + jb * 12288, must=True)


def ld_P():
    return [ds_read128(Pf[ib][ks], paddr, (ib * 4 + ks) * 1024, must=True) for ib in range(2) for ks in range(4)]


def cvtU(td, jb):
    acc, dst = UA[td][jb], Ub[td][jb]
    return [valu("v_cvt_pk_bf16_f32", dst[k], acc[2 * k], acc[2 * k + 1]) for k in range(8)]


def cvtO(td, ib):
    acc, dst = OA[td & 1][ib], ob[ib]
    out = [valu("v_cvt_pk_bf16_f32", dst[k], acc[2 * k], acc[2 * k + 1]) for k in range(8)]
    out.append(ds_write128(oswr[0], dst.sub(0, 4), ib * 6144 + td * 64, must=False))
    out.append(ds_write128(oswr[1], dst.sub(4, 4), ib * 6144 + td * 64, must=False))
    return out


def o_readback():
    return [ds_read128(Or[3 * m + b], osrd[b], m * 3072) for m in range(4) for b in range(3)]


def o_stores():
    out = []
    for m in range(4):
        out.append(salu("s_add_u32", sSO, sSTW, str(2 * m * IMROW)))
        for b in range(3):
            out.append(buf_store(Or[3 * m + b], stoff[b], SRD_O, sSO, 0))
    return out


_lbl = [0]


def first_iter_wait(vm):
    _lbl[0] += 1
    l = f"L_fw{_lbl[0]}"
    return [scmp("s_cmp_lg_u32", sN, "0"), raw(f"s_cbranch_scc1 {l}", ["scc"]), waitcnt(vm=vm), label(l)]


def dma_window(woff, bufbase):
    out = []
    for k in range(4):
        out.append(salu("s_add_u32", sM0, bufbase, str(2 * k * 3072)))
        out.append(salu("s_add_u32", sSO, woff, str(2 * k * IMROW)))
        out.append(salu("s_mov_b32", "m0", sM0, scc=False))
        for b in range(3):
            out.append(buf_dma(dmaoff[b], SRD_X, sSO, b * 1024))
    return out


def o_scalar_update():
    p = []
    p.append(salu("s_add_u32", sT3, sW0, sN))
    p.append(salu("s_sub_u32", sT3, sT3, "2"))
    p += win_off(sSTW, sT3)
    p.append(scmp("s_cmp_lt_u32", sN, "2"))
    p.append(salu("s_cselect_b32", sSTW, str(OOB), sSTW, scc=False))
    p.append(salu("s_add_u32", sT3, sW0, sN))
    p.append(salu("s_add_u32", sT3, sT3, str(NB - 1)))
    p += win_off(sDMAW, sT3)
    p.append(salu("s_add_u32", sDMAW, sDMAW, sTMP))
    p.append(scmp("s_cmp_gt_u32", sN, str(NWIN - NB)))
    p.append(salu("s_cselect_b32", sDMAW, str(OOB), sDMAW, scc=False))
    return p


def dma_buf_update():
    return [
        salu("s_add_u32", sDBI, sDBI, "1"),
        salu("s_add_u32", sDMABUF, sDMABUF, str(XWIN)),
        scmp("s_cmp_eq_u32", sDBI, str(NB)),
        salu("s_cselect_b32", sDBI, "0", sDBI, scc=False),
        salu("s_cselect_b32", sT1, str(NB * XWIN), "0", scc=False),
        salu("s_sub_u32", sDMABUF, sDMABUF, sT1),
    ]


def gen_O_body():
    spine = []
    spine += U2(18, 24)
    spine += O_tile(0)
    spine += O_tile(1)
    spine += O_tile(2)
    spine += U01()
    spine += U2(0, 18)
    s = Sched(spine)
    s.put(-1, ld_P())
    s.put(0, valu("v_xor_b32", paddr, "0x2000", paddr))
    s.spread(o_scalar_update(), 0, 5)
    for u in range(8):
        s.put(6 + u, ld_X(u))
    for u in range(8, 24):
        s.put(31 + 2 * (u - 8), ld_X(u))
    for f in range(8):
        s.put(63 + 2 * f, ld_X(24 + f))
    for f in range(16):
        s.put(78 + f, ld_X(32 + f))
    s.spread(cvtO(0, 0), 13, 19)
    s.spread(cvtO(0, 1), 18, 24)
    s.spread(cvtU(0, 0) + cvtU(0, 1), 14, 25)
    s.spread(cvtU(1, 0) + cvtU(1, 1), 22, 30)
    s.spread(cvtO(1, 0) + cvtO(1, 1), 32, 40)
    s.spread(cvtO(2, 0) + cvtO(2, 1), 41, 49)
    s.put(29, first_iter_wait(48))
    s.put(51, first_iter_wait(24))
    s.spread(o_readback(), 51, 56)
    s.spread(o_stores(), 55, 66)
    s.spread(cvtU(2, 0) + cvtU(2, 1), 57, 68)
    s.spread(dma_window(sDMAW, sDMABUF), 67, 90)
    s.put(91, dma_buf_update())
    s.put(94, delta_update())
    s.put(95, [valu("v_add_u32", cur[k], sDELTA, cur[k]) for k in range(4)])
    return s


def gen_O_tail1():
    spine = U2(18, 24) + O_tile(0) + O_tile(1) + O_tile(2)
    s = Sched(spine)
    s.put(-1, ld_P())
    s.put(0, valu("v_xor_b32", paddr, "0x2000", paddr))
    s.spread(o_scalar_update(), 0, 5)
    s.spread(cvtO(0, 0), 13, 19)
    s.spread(cvtO(0, 1), 18, 24)
    s.spread(cvtU(0, 0) + cvtU(0, 1), 14, 25)
    s.spread(cvtU(1, 0) + cvtU(1, 1), 22, 29)
    p = s.linear()
    p += cvtO(1, 0) + cvtO(1, 1) + cvtO(2, 0) + cvtO(2, 1) + o_readback() + cvtU(2, 0) + cvtU(2, 1) + o_stores()
    return p


def gen_O_tail2():
    spine = O_tile(0) + O_tile(1) + O_tile(2)
    s = Sched(spine)
    s.put(-1, ld_P())
    s.put(-1, o_scalar_update())
    s.spread(cvtO(0, 0), 7, 13)
    s.spread(cvtO(0, 1), 12, 18)
    p = s.linear()
    p += cvtO(1, 0) + cvtO(1, 1) + cvtO(2, 0) + cvtO(2, 1) + o_readback() + o_stores()
    return p


def gen_main():
    out = []
    p = []
    e = p.append
    e(scmp("s_cmp_ge_u32", S(2), "256"))
    e(raw("s_cbranch_scc1 L_end", ["scc"]))
    e(raw("s_load_dwordx2 s[4:5], s[0:1], 0", [S(0, 2)], [S(4, 2)]))
    e(raw("s_load_dwordx2 s[6:7], s[0:1], 24", [S(0, 2)], [S(6, 2)]))
    e(raw("s_load_dwordx2 s[24:25], s[0:1], 40", [S(0, 2)], [S(24, 2)]))
    L, H, L31, R_, T1, T2 = V(250), V(251), V(252), V(253), V(244), V(245)
    T3 = V(254)
    BK = [V(246 + k) for k in range(4)]
    e(valu("v_lshrrev_b32", T1, "6", V(0)))
    e(valu("v_and_b32", L, "63", V(0)))
    e(rfl(sWAVE, T1))
    e(valu("v_lshrrev_b32", H, "5", L))
    e(valu("v_and_b32", L31, "31", L))
    e(valu("v_lshrrev_b32", R_, "1", L31))
    e(valu("v_and_b32", R_, "7", R_))
    e(valu("v_mul_u32_u24", T1, str(ROWB), L31))
    for k in range(4):
        e(valu("v_add_u32", T2, str(2 * k), H))
        e(valu("v_xor_b32", T2, T2, R_))
        e(valu("v_lshlrev_b32", T2, "4", T2))
        e(valu("v_add_u32", BK[k], T1, T2))
        e(valu("v_add_u32", BK[k], str(XB), BK[k]))
    e(salu("s_mul_i32", sW0, S(2), str(NWIN), scc=False))
    e(salu("s_mov_b32", sN, "0", scc=False))
    e(salu("s_mov_b32", sBI, "0", scc=False))
    e(salu("s_mov_b32", sXWIN, str(XWIN), scc=False))
    e(salu("s_mov_b32", sC, f32bits(CSCALE), scc=False))
    e(salu("s_mov_b32", sNC, f32bits(-CSCALE), scc=False))
    e(waitcnt(lgkm=0))
    p += srd(8, 4, X_BYTES)
    p += srd(12, 6, X_BYTES)
    p += srd(16, 24, WS_BYTES)
    if DIAG:
        p += srd(44, 24, 4 << 20)
        e(salu("s_mov_b32", sSTI, "0", scc=False))
        e(salu("s_mov_b32", S(43), sWAVE, scc=False))
        e(valu("v_mov_b32", V(220), "0"))
        e(valu("v_mov_b32", V(236), "0"))
        e(valu("v_mov_b32", V(222), L))
        e(valu("v_mov_b32", V(238), L))
    e(scmp("s_cmp_ge_u32", sWAVE, "2"))
    e(raw("s_cbranch_scc1 L_owave", ["scc"]))
    out += finalize(p)

    p = []
    e = p.append
    LANE16 = V(210)
    e(valu("v_lshlrev_b32", LANE16, "4", L))
    for f in range(72):
        if f % 4 == 0:
            e(salu("s_mov_b32", sT1, str(f * 1024), scc=False))
        e(buf_load(Mfrag(f // 12, f % 12), LANE16, SRD_W, sT1, (f % 4) * 1024))
        if f == 59:
            e(waitcnt(vm=50))
    pre = []
    e2 = pre.append
    e2(salu("s_mul_i32", sT2, sWAVE, "12288", scc=False))
    e2(salu("s_sub_u32", sT3, "12288", sT2))
    for k in range(4):
        e2(valu("v_add_u32", nxt[k], sT2, BK[k]))
        e2(valu("v_add_u32", curO[k], sT3, BK[k]))
    e2(salu("s_mul_i32", sT2, sWAVE, str(4096 + 2048), scc=False))
    e2(salu("s_add_u32", sT2, sT2, str(PB + 8192)))
    e2(valu("v_lshlrev_b32", V(211), "4", L))
    e2(valu("v_add_u32", pown, sT2, V(211)))
    e2(salu("s_mul_i32", sT2, sWAVE, str(4096 - 2048), scc=False))
    e2(salu("s_add_u32", sT2, sT2, str(PB + 8192 + 2048)))
    e2(valu("v_add_u32", poth, sT2, V(211)))
    p = stamp(V(220)) + pre + p
    e = p.append
    p += stamp(V(220))
    e(barrier())
    p += stamp(V(220))
    for k in range(12):
        e(ld_Xo(k))
    e(waitcnt(lgkm=0))
    out += finalize(p)
    sb = gen_S_body()
    body = [label("L_s_loop")] + sb.linear()
    body += stamp(V(220)) + [barrier()] + stamp(V(220)) + [
             salu("s_add_u32", sN, sN, "1"),
             scmp("s_cmp_lt_u32", sN, str(NWIN)),
             raw("s_cbranch_scc1 L_s_loop", ["scc"])]
    print("S gaps:", sb.report(), file=sys.stderr)
    fb = finalize(body, loop=True)
    out += fb
    tail = gen_S_tail() + stamp(V(220)) + [barrier()] + stamp(V(220)) + stamp_store(V(220), V(221)) + [raw("s_endpgm")]
    out += finalize(tail, pre=fb[-40:])

    p = []
    e = p.append
    e(label("L_owave"))
    p += stamp(V(236), "s_memrealtime")
    p += stamp(V(236))
    e(salu("s_sub_u32", sWAVE, sWAVE, "2"))
    for k in range(4):
        e(valu("v_mov_b32", cur[k], BK[k]))
    e(valu("v_lshlrev_b32", paddr, "4", L))
    e(salu("s_lshl_b32", sT1, sWAVE, "2"))
    for b in range(3):
        e(valu("v_add_u32", T1, str(64 * b), L))
        e(valu("v_mul_u32_u24", T1, "2731", T1))
        e(valu("v_lshrrev_b32", T1, "17", T1))
        e(valu("v_or_b32", T1, sT1, T1))
        e(valu("v_xor_b32", T1, T1, L))
        e(valu("v_lshlrev_b32", dmaoff[b], "4", T1))
    e(salu("s_mul_i32", sT2, sWAVE, "12288", scc=False))
    e(salu("s_add_u32", sT2, sT2, str(OSB)))
    e(valu("v_and_b32", T1, "3", R_))
    e(valu("v_mul_u32_u24", T2, "192", L31))
    e(valu("v_add_u32", T2, sT2, T2))
    for a1 in range(2):
        e(valu("v_add_u32", T3, str(2 * a1), H))
        e(valu("v_xor_b32", T3, T3, T1))
        e(valu("v_lshlrev_b32", T3, "4", T3))
        e(valu("v_add_u32", oswr[a1], T2, T3))
    e(salu("s_mov_b32", sT3, str(IMROW), scc=False))
    e(salu("s_mul_i32", sT1, sWAVE, "192", scc=False))
    for b in range(3):
        e(valu("v_add_u32", T1, str(64 * b), L))
        e(valu("v_mul_u32_u24", T2, "5462", T1))
        e(valu("v_lshrrev_b32", T2, "16", T2))
        e(valu("v_lshrrev_b32", T3, "1", T2))
        e(valu("v_and_b32", T3, "3", T3))
        e(valu("v_xor_b32", T3, T3, T1))
        e(valu("v_lshlrev_b32", T3, "4", T3))
        e(valu("v_add_u32", osrd[b], sT2, T3))
        e(valu("v_mul_u32_u24", T3, "12", T2))
        e(valu("v_sub_u32", T1, T1, T3))
        e(valu("v_lshlrev_b32", T1, "4", T1))
        e(valu("v_add_u32", T1, sT1, T1))
        e(valu("v_and_b32", T3, "7", T2))
        e(valu("v_mul_u32_u24", T3, str(ROWB), T3))
        e(valu("v_add_u32", T1, T1, T3))
        e(valu("v_lshrrev_b32", T3, "3", T2))
        e(valu("v_mul_lo_u32", T3, T3, sT3))
        e(valu("v_add_u32", stoff[b], T1, T3))
    e(salu("s_mul_i32", sTMP, sWAVE, str(IMROW), scc=False))
    e(salu("s_mul_i32", sDMABUF, sWAVE, "3072", scc=False))
    e(salu("s_add_u32", sDMABUF, sDMABUF, str(XB)))
    e(salu("s_mov_b32", sDBI, "0", scc=False))
    LANE16 = V(255)
    e(valu("v_lshlrev_b32", LANE16, "4", L))

    def pro_dma(k):
        q = [salu("s_add_u32", sT3, sW0, str(k))]
        q += win_off(sDMAW, sT3)
        q.append(salu("s_add_u32", sDMAW, sDMAW, sTMP))
        q += dma_window(sDMAW, sDMABUF)
        q += dma_buf_update()
        return q

    p += pro_dma(0)
    p += pro_dma(1)
    e(salu("s_mul_i32", sT3, sWAVE, str(36 * 1024), scc=False))
    e(salu("s_add_u32", sT3, sT3, "73728"))
    worder = [(td, s_) for s_ in range(12) for td in range(2)] + [(2, s_) for s_ in range(12)]
    for td, s_ in worder:
        f = td * 12 + s_
        e(salu("s_add_u32", sT1, sT3, str((f // 4) * 4096)))
        e(buf_load(Wf[td][s_], LANE16, SRD_W, sT1, (f % 4) * 1024))
    e(waitcnt(vm=36))
    p += stamp(V(236))
    e(barrier())
    p += stamp(V(236))
    for k in range(2, NB - 1):
        p += pro_dma(k)
    out += finalize(p)
    ob_ = gen_O_body()
    body = [label("L_o_loop")] + ob_.linear()
    body += stamp(V(236)) + [waitcnt(vm=36)] + stamp(V(236)) + [barrier()] + stamp(V(236)) + [
             salu("s_add_u32", sN, sN, "1"),
             scmp("s_cmp_lt_u32", sN, str(NWIN)),
             raw("s_cbranch_scc1 L_o_loop", ["scc"])]
    print("O gaps:", ob_.report(), file=sys.stderr)
    fb = finalize(body, loop=True)
    out += fb
    t1 = gen_O_tail1() + stamp(V(236)) + [barrier()] + stamp(V(236)) + [salu("s_add_u32", sN, sN, "1")]
    t1 = finalize(t1, pre=fb[-40:])
    out += t1
    t2 = gen_O_tail2() + stamp(V(236)) + [waitcnt(vm=0)] + stamp(V(236)) + stamp(V(236), "s_memrealtime") + stamp_store(V(236), V(237)) + [label("L_end"), raw("s_endpgm")]
    out += finalize(t2, pre=t1[-40:])
    return out


HEADER = f"""; Kernarg layout for this problem (48 bytes, ptrs only, base s[0:1]):
; @launch kernel=swin_fold_kernel grid=(72,1,1) block=(64,1,1) lds=0
; @launch kernel={NAME}_kernel grid=(256,1,1) block=(256,1,1) lds={LDS_BYTES}
.amdgcn_target "amdgcn-amd-amdhsa--gfx950"
.text
"""


def kd(name, vgpr, sgpr, accum):
    return f""".amdhsa_kernel {name}
  .amdhsa_next_free_vgpr {vgpr}
  .amdhsa_next_free_sgpr {sgpr}
  .amdhsa_accum_offset {accum}
  .amdhsa_group_segment_fixed_size 0
  .amdhsa_kernarg_size 48
  .amdhsa_user_sgpr_count 2
  .amdhsa_user_sgpr_kernarg_segment_ptr 1
  .amdhsa_system_sgpr_workgroup_id_x 1
.end_amdhsa_kernel
"""


def main():
    s = HEADER
    s += f".globl {NAME}_kernel\n.p2align 8\n.type {NAME}_kernel,@function\n{NAME}_kernel:\n"
    s += text(gen_main()) + "\n"
    s += ".globl swin_fold_kernel\n.p2align 8\n.type swin_fold_kernel,@function\nswin_fold_kernel:\n"
    s += text(gen_fold()) + "\n"
    s += '.section .rodata,"a"\n.p2align 6\n'
    s += kd(f"{NAME}_kernel", 512, 64, 256)
    s += ".p2align 6\n"
    s += kd("swin_fold_kernel", 184, 48, 184)
    outp = sys.argv[1] if len(sys.argv) > 1 else f"cdna_kernels/{NAME}.s"
    open(outp, "w").write(s)


if __name__ == "__main__":
    main()
```

```python
import struct
import sys

from asmlib import *

NAME = "standalone__swin_window_attn__vision"
X_BYTES = 56623104
WQKV_BYTES = 192 * 576 * 2
WO_BYTES = 192 * 192 * 2
WS_BYTES = 2 * 73728
ROWB = 384
IMROW = 147456
STRIP = 8 * IMROW
NB = 5
XWIN = 24576
PB = 0
OSB = 16384
XB = OSB + 2 * 12288
LDS_BYTES = XB + NB * XWIN
OOB = 0x40000000
NWIN = 9


def f32bits(x):
    return "0x%08x" % struct.unpack("<I", struct.pack("<f", x))[0]


CSCALE = (192 ** -0.5) * 1.4426950408889634


def srd(dst, ptr, nbytes):
    return [
        salu("s_mov_b32", S(dst), S(ptr), scc=False),
        salu("s_and_b32", S(dst + 1), S(ptr + 1), "0xffff"),
        salu("s_mov_b32", S(dst + 2), str(nbytes), scc=False),
        salu("s_mov_b32", S(dst + 3), "0x00020000", scc=False),
    ]


def rfl(dst, src):
    i = I(f"v_readfirstlane_b32 {dst}, {src}", [src], [dst], kind="valu")
    i.meta["rfl"] = True
    return i


def gen_fold():
    p = []
    e = p.append
    e(scmp("s_cmp_ge_u32", S(2), "72"))
    e(raw("s_cbranch_scc1 L_fold_end", ["scc"]))
    e(raw("s_load_dwordx4 s[4:7], s[0:1], 8", [S(0, 2)], [S(4, 4)]))
    e(raw("s_load_dwordx2 s[24:25], s[0:1], 40", [S(0, 2)], [S(24, 2)]))
    e(scmp("s_cmp_ge_u32", S(2), "36"))
    e(salu("s_cselect_b32", S(26), "1", "0", scc=False))
    e(salu("s_mul_i32", S(27), S(26), "36", scc=False))
    e(salu("s_sub_u32", S(27), S(2), S(27)))
    e(salu("s_mul_i32", S(28), S(27), "43", scc=False))
    e(salu("s_lshr_b32", S(28), S(28), "8"))
    e(salu("s_mul_i32", S(29), S(28), "6", scc=False))
    e(salu("s_sub_u32", S(29), S(27), S(29)))
    e(valu("v_and_b32", V(1), "31", V(0)))
    e(valu("v_lshrrev_b32", V(2), "5", V(0)))
    e(valu("v_and_b32", V(3), "0x13", V(1)))
    e(valu("v_and_b32", V(4), "4", V(1)))
    e(valu("v_lshlrev_b32", V(4), "1", V(4)))
    e(valu("v_or_b32", V(3), V(3), V(4)))
    e(valu("v_and_b32", V(4), "8", V(1)))
    e(valu("v_lshrrev_b32", V(4), "1", V(4)))
    e(valu("v_or_b32", V(3), V(3), V(4)))
    e(waitcnt(lgkm=0))
    p += srd(8, 4, WQKV_BYTES)
    p += srd(12, 6, WO_BYTES)
    p += srd(16, 24, WS_BYTES)
    e(salu("s_lshl_b32", S(30), S(28), "5"))
    e(valu("v_add_u32", V(5), S(30), V(3)))
    e(valu("v_mul_u32_u24", V(5), "1152", V(5)))
    e(valu("v_lshlrev_b32", V(6), "4", V(2)))
    e(valu("v_add_u32", V(5), V(5), V(6)))
    e(salu("s_mul_i32", S(31), S(26), "768", scc=False))
    e(valu("v_add_u32", V(5), S(31), V(5)))
    AF = [V(16 + 4 * k, 4) for k in range(12)]
    BF = [V(64 + 4 * k, 4) for k in range(12)]
    for ks in range(12):
        e(buf_load(AF[ks], V(5), S(8, 4), "0", ks * 32))
    e(salu("s_lshl_b32", S(30), S(29), "5"))
    e(valu("v_add_u32", V(7), S(30), V(3)))
    e(scmp("s_cmp_eq_u32", S(26), "1"))
    e(raw("s_cbranch_scc1 L_fold_wo", ["scc"]))
    e(valu("v_mul_u32_u24", V(8), "1152", V(7)))
    e(valu("v_add_u32", V(8), V(8), V(6)))
    e(valu("v_add_u32", V(8), "384", V(8)))
    for ks in range(12):
        e(buf_load(BF[ks], V(8), S(8, 4), "0", ks * 32))
    e(waitcnt(vm=0))
    e(raw("s_branch L_fold_mm"))
    e(label("L_fold_wo"))
    e(valu("v_mul_u32_u24", V(8), str(8 * 384), V(2)))
    e(valu("v_lshlrev_b32", V(9), "1", V(7)))
    e(valu("v_add_u32", V(8), V(8), V(9)))
    for half in range(2):
        for ks in range(6 * half, 6 * half + 6):
            e(salu("s_mov_b32", S(32), str(ks * 16 * 384), scc=False))
            for jj in range(8):
                e(buf_load(V(128 + (ks % 6) * 8 + jj), V(8), S(12, 4), S(32), jj * 384,
                           op="buffer_load_ushort"))
        e(waitcnt(vm=0))
        for ks in range(6 * half, 6 * half + 6):
            for k in range(4):
                b = 128 + (ks % 6) * 8 + 2 * k
                e(valu("v_lshl_or_b32", BF[ks][k], V(b + 1), "16", V(b)))
    e(label("L_fold_mm"))
    D = V(112, 16)
    for ks in range(12):
        e(mfma(D, AF[ks], BF[ks], D if ks else 0))
    for k in range(8):
        e(valu("v_cvt_pk_bf16_f32", V(16 + k), D[2 * k], D[2 * k + 1]))
    e(salu("s_mul_i32", S(33), S(29), "12", scc=False))
    e(salu("s_lshl_b32", S(34), S(28), "1"))
    e(salu("s_add_u32", S(33), S(33), S(34)))
    e(salu("s_lshl_b32", S(33), S(33), "10"))
    e(salu("s_mul_i32", S(34), S(26), "73728", scc=False))
    e(salu("s_add_u32", S(33), S(33), S(34)))
    e(valu("v_lshlrev_b32", V(10), "4", V(0)))
    e(buf_store(V(16, 4), V(10), S(16, 4), S(33), 0))
    e(buf_store(V(20, 4), V(10), S(16, 4), S(33), 1024))
    e(label("L_fold_end"))
    e(raw("s_endpgm"))
    return finalize(p)


SRD_X, SRD_O, SRD_W = S(8, 4), S(12, 4), S(16, 4)
sWAVE, sN, sW0 = S(20), S(21), S(22)
sBI, sDELTA = S(23), S(26)
sC, sNC = S(27), S(28)
sT1, sT2, sT3 = S(29), S(30), S(31)
sDMAW, sSTW, sDMABUF, sDBI = S(32), S(33), S(34), S(35)
sM0, sSO = S(36), S(37)
sTMP = S(38)
sXWIN = S(39)


import os
DIAG = int(os.environ.get("DIAG", "0"))
LDMOD = os.environ.get("LDMOD", "")
STMOD = os.environ.get("STMOD", "")
sST = S(40, 2)
sSTI = S(42)
SRD_D = S(44, 4)


def stamp(vreg, op="s_memtime"):
    if not DIAG:
        return []
    return [
        raw(f"{op} s[40:41]", [], [sST]),
        waitcnt(lgkm=0),
        valu("v_mov_b32", V(vreg.base + 3), S(40)),
        raw(f"v_cmp_eq_u32 vcc, s42, v{vreg.base + 2}", [sSTI, V(vreg.base + 2)], ["vcc"], kind="valu"),
        nop(2),
        raw(f"v_cndmask_b32 {vreg}, {vreg}, v{vreg.base + 3}, vcc", [vreg, V(vreg.base + 3), "vcc"], [vreg], kind="valu"),
        salu("s_add_u32", sSTI, sSTI, "1"),
    ]


def stamp_store(vreg, vtmp):
    if not DIAG:
        return []
    return [
        raw(f"v_mbcnt_lo_u32_b32 {vtmp}, -1, 0", [], [vtmp], kind="valu"),
        raw(f"v_mbcnt_hi_u32_b32 {vtmp}, -1, {vtmp}", [vtmp], [vtmp], kind="valu"),
        valu("v_lshlrev_b32", vtmp, "2", vtmp),
        salu("s_lshl_b32", sT1, S(2), "2"),
        salu("s_add_u32", sT1, sT1, S(43)),
        salu("s_lshl_b32", sT1, sT1, "8"),
        salu("s_add_u32", sT1, sT1, str(1 << 20)),
        buf_store(vreg, vtmp, SRD_D, sT1, 0, op="buffer_store_dword"),
    ]


def win_off(dst, w):
    return [
        salu("s_mul_hi_u32", sT1, w, "89478486", scc=False),
        salu("s_mul_i32", sT2, sT1, "48", scc=False),
        salu("s_sub_u32", sT2, w, sT2),
        salu("s_mul_i32", sT1, sT1, str(STRIP), scc=False),
        salu("s_mul_i32", sT2, sT2, "3072", scc=False),
        salu("s_add_u32", dst, sT1, sT2),
    ]


TA = [V(0, 16), V(16, 16)]
SAo, SAx = V(32, 16), V(48, 16)
Yo, Yx = V(64, 16), V(80, 16)
Tb = [V(96, 8), V(104, 8), V(112, 8)]
Xo = [V(120 + 4 * s, 4) for s in range(12)]
Xa = [[V(168, 4), V(172, 4)], [V(176, 4), V(180, 4)]]
Xa5 = [V(184, 4), V(188, 4)]
curO = [V(192 + k) for k in range(4)]
nxt = [V(196 + k) for k in range(4)]
pown, poth = V(200), V(201)
mx0, mx1, tt, nm = V(202), V(203), V(204), V(205)
sm = [V(206), V(207), V(208), V(209)]


def Mfrag(t, s):
    f = t * 12 + s
    return A(4 * f, 4) if f < 64 else V(224 + 4 * (f - 64), 4)


def xoff(s):
    return s & 3, (s >> 2) * 128


def T_tile(t):
    acc = TA[t & 1]
    return [mfma(acc, Mfrag(t, s), Xo[s], acc if s else 0) for s in range(12)]


def S_tile(t):
    out = []
    tb = Tb[t % 3]
    for u in range(2):
        own = Xa5[u] if t == 5 else Xo[2 * t + u]
        first = (t == 0 and u == 0)
        out.append(mfma(SAo, own, tb.sub(4 * u, 4), 0 if first else SAo))
        out.append(mfma(SAx, Xa[t & 1][u], tb.sub(4 * u, 4), 0 if first else SAx))
    return out


def cvtT(t):
    acc, tb = TA[t & 1], Tb[t % 3]
    return [valu("v_cvt_pk_bf16_f32", tb[k], acc[2 * k], acc[2 * k + 1]) for k in range(8)]


def ld_Xa(t):
    out = []
    for u in range(2):
        k, off = xoff(2 * t + u)
        out.append(ds_read128(Xa[t & 1][u], curO[k], off, must=True))
    return out


def ld_Xa5():
    out = []
    for u in range(2):
        k, off = xoff(10 + u)
        out.append(ds_read128(Xa5[u], nxt[k], off, must=True))
    return out


def ld_Xo(s):
    k, off = xoff(s)
    return ds_read128(Xo[s], nxt[k], off)


def sm_max():
    out = []
    for acc, m in ((SAo, mx0), (SAx, mx1)):
        out.append(valu("v_max3_f32", m, acc[0], acc[1], acc[2]))
        for k in range(3, 15, 2):
            out.append(valu("v_max3_f32", m, m, acc[k], acc[k + 1]))
        out.append(valu("v_max_f32", m, m, acc[15]))
    a, b = out[:8], out[8:]
    out = [x for pair in zip(a, b) for x in pair]
    out.append(valu("v_max_f32", mx0, mx0, mx1))
    out.append(valu("v_mov_b32", tt, mx0))
    out.append(permswap(mx0, tt))
    out.append(valu("v_max_f32", mx0, mx0, tt))
    out.append(valu("v_mul_f32", nm, sNC, mx0))
    return out


def sm_fma():
    return [valu("v_fma_f32", Y[r], SA_[r], sC, nm) for (Y, SA_) in ((Yo, SAo), (Yx, SAx)) for r in range(16)]


def sm_exp():
    return [valu("v_exp_f32", Y[r], Y[r]) for Y in (Yo, Yx) for r in range(16)]


def sm_sum():
    out = []
    ys = [Y[r] for Y in (Yo, Yx) for r in range(16)]
    for k, y in enumerate(ys):
        acc = sm[k & 3]
        if k < 4:
            out.append(valu("v_mov_b32", acc, y))
        else:
            out.append(valu("v_add_f32", acc, acc, y))
    return out


def sm_fin():
    return [
        valu("v_add_f32", sm[0], sm[0], sm[1]),
        valu("v_add_f32", sm[2], sm[2], sm[3]),
        valu("v_add_f32", sm[0], sm[0], sm[2]),
        valu("v_mov_b32", tt, sm[0]),
        permswap(sm[0], tt),
        valu("v_add_f32", sm[0], sm[0], tt),
        valu("v_rcp_f32", nm, sm[0]),
    ]


def sm_norm():
    out = []
    for Y, addr in ((Yo, pown), (Yx, poth)):
        for u in range(2):
            for r in range(8):
                out.append(valu("v_mul_f32", Y[8 * u + r], Y[8 * u + r], nm))
            for k in range(4):
                out.append(valu("v_cvt_pk_bf16_f32", Y[8 * u + k], Y[8 * u + 2 * k], Y[8 * u + 2 * k + 1]))
            out.append(ds_write128(addr, Y.sub(8 * u, 4), u * 1024))
    return out


def delta_update():
    return [
        salu("s_add_u32", sBI, sBI, "1"),
        scmp("s_cmp_eq_u32", sBI, str(NB)),
        salu("s_cselect_b32", sDELTA, str(-(NB - 1) * XWIN & 0xffffffff), sXWIN, scc=False),
        salu("s_cselect_b32", sBI, "0", sBI, scc=False),
    ]


def gen_S_body():
    spine = []
    spine += T_tile(0)
    spine += S_tile(5)
    spine += T_tile(1)
    spine += T_tile(2)
    spine += S_tile(0)
    spine += S_tile(1)
    spine += T_tile(3)
    spine += S_tile(2)
    spine += T_tile(4)
    spine += S_tile(3)
    spine += T_tile(5)
    spine += S_tile(4)
    s = Sched(spine)
    s.put(-1, delta_update())
    for t, g in enumerate((-1, 15, 27, 47, 63, 79)):
        s.put(g, waitcnt(vm=72 - 12 * (t + 1)))
    s.spread(cvtT(5), 0, 5)
    s.put(1, ld_Xa(0))
    s.put(16, ld_Xa5())
    s.put(17, ld_Xa(1))
    s.spread(cvtT(0), 17, 20)
    s.spread(sm_max(), 19, 24)
    s.spread(sm_fma(), 25, 37)
    s.spread([valu("v_add_u32", nxt[k], sDELTA, nxt[k]) for k in range(4)], 20, 23)
    s.spread(cvtT(1), 31, 36)
    s.spread(sm_exp(), 30, 58)
    s.spread(sm_sum(), 34, 62)
    s.spread(cvtT(2), 43, 48)
    s.put(44, ld_Xa(2))
    s.put(48, ld_Xa(3))
    s.spread(cvtT(3), 63, 68)
    s.put(64, ld_Xa(4))
    s.spread(sm_fin(), 63, 66)
    s.spread(sm_norm(), 68, 86)
    s.spread(cvtT(4), 79, 84)
    s.put(80, ld_Xa(5))
    for k in range(12):
        if k == 8:
            s.put(93, ld_Xo(k))
        elif k == 9:
            s.put(95, ld_Xo(k))
        else:
            s.put(80 + k, ld_Xo(k))
    s.spread([valu("v_add_u32", curO[k], sDELTA, curO[k]) for k in range(4)], 88, 91)
    s.put(92, valu("v_xor_b32", pown, "0x2000", pown), valu("v_xor_b32", poth, "0x2000", poth))
    return s


def gen_S_tail():
    p = []
    p += cvtT(5)
    p += S_tile(5)
    p += sm_max() + sm_fma() + sm_exp() + sm_sum() + sm_fin() + sm_norm()
    return p


Wf = [[A((td * 12 + s) * 4, 4) for s in range(12)] for td in range(3)]
Xr = [A(144 + 4 * k, 4) for k in range(8)]
Pf = [[A(176 + (ib * 4 + ks) * 4, 4) for ks in range(4)] for ib in range(2)]
UA = [[V(td * 32 + jb * 16, 16) for jb in range(2)] for td in range(3)]
Ub = [[V(96 + td * 16 + jb * 8, 8) for jb in range(2)] for td in range(3)]
OA = [[V(144 + b * 32 + ib * 16, 16) for ib in range(2)] for b in range(2)]
ob = [V(208, 8), V(216, 8)]
cur = [V(224 + k) for k in range(4)]
paddr = V(228)
dmaoff = [V(229), V(230), V(231)]
stoff = [V(232), V(233), V(234)]
oswr = [V(235), V(240)]
osrd = [V(241), V(242), V(243)]
Or = [A(208 + 4 * k, 4) for k in range(12)]


def O_tile(td):
    out = []
    for ib in range(2):
        acc = OA[td & 1][ib]
        for ks in range(4):
            jb, u = ks >> 1, ks & 1
            out.append(mfma(acc, Ub[td][jb].sub(4 * u, 4), Pf[ib][ks], acc if ks else 0))
    return out


def U01():
    out = []
    for s in range(12):
        for jb in range(2):
            x = Xr[(2 * s + jb) % 8]
            for td in range(2):
                acc = UA[td][jb]
                out.append(mfma(acc, x, Wf[td][s], acc if s else 0))
    return out


def U2(f0, f1):
    out = []
    for f in range(f0, f1):
        s, jb = f >> 1, f & 1
        acc = UA[2][jb]
        out.append(mfma(acc, Xr[(24 + f) % 8], Wf[2][s], acc if s else 0))
    return out


def ld_X(u):
    f = u % 24
    s, jb = f >> 1, f & 1
    k, off = xoff(s)
    return ds_read128(Xr[u % 8], cur[k], off + jb * 12288, must=True)


def ld_P():
    return [ds_read128(Pf[ib][ks], paddr, (ib * 4 + ks) * 1024, must=True) for ib in range(2) for ks in range(4)]


def cvtU(td, jb):
    acc, dst = UA[td][jb], Ub[td][jb]
    return [valu("v_cvt_pk_bf16_f32", dst[k], acc[2 * k], acc[2 * k + 1]) for k in range(8)]


def cvtO(td, ib):
    acc, dst = OA[td & 1][ib], ob[ib]
    out = [valu("v_cvt_pk_bf16_f32", dst[k], acc[2 * k], acc[2 * k + 1]) for k in range(8)]
    out.append(ds_write128(oswr[0], dst.sub(0, 4), ib * 6144 + td * 64, must=False))
    out.append(ds_write128(oswr[1], dst.sub(4, 4), ib * 6144 + td * 64, must=False))
    return out


def o_readback():
    return [ds_read128(Or[3 * m + b], osrd[b], m * 3072) for m in range(4) for b in range(3)]


def o_stores():
    out = []
    for m in range(4):
        out.append(salu("s_add_u32", sSO, sSTW, str(2 * m * IMROW)))
        for b in range(3):
            out.append(buf_store(Or[3 * m + b], stoff[b], SRD_O, sSO, 0, mods=STMOD))
    return out


_lbl = [0]


def first_iter_wait(vm):
    _lbl[0] += 1
    l = f"L_fw{_lbl[0]}"
    return [scmp("s_cmp_lg_u32", sN, "0"), raw(f"s_cbranch_scc1 {l}", ["scc"]), waitcnt(vm=vm), label(l)]


def dma_window(woff, bufbase):
    out = []
    for k in range(4):
        out.append(salu("s_add_u32", sM0, bufbase, str(2 * k * 3072)))
        out.append(salu("s_add_u32", sSO, woff, str(2 * k * IMROW)))
        out.append(salu("s_mov_b32", "m0", sM0, scc=False))
        for b in range(3):
            out.append(buf_dma(dmaoff[b], SRD_X, sSO, b * 1024, mods=LDMOD))
    return out


def o_scalar_update():
    p = []
    p.append(salu("s_add_u32", sT3, sW0, sN))
    p.append(salu("s_sub_u32", sT3, sT3, "2"))
    p += win_off(sSTW, sT3)
    p.append(scmp("s_cmp_lt_u32", sN, "2"))
    p.append(salu("s_cselect_b32", sSTW, str(OOB), sSTW, scc=False))
    p.append(salu("s_add_u32", sT3, sW0, sN))
    p.append(salu("s_add_u32", sT3, sT3, str(NB - 1)))
    p += win_off(sDMAW, sT3)
    p.append(salu("s_add_u32", sDMAW, sDMAW, sTMP))
    p.append(scmp("s_cmp_gt_u32", sN, str(NWIN - NB)))
    p.append(salu("s_cselect_b32", sDMAW, str(OOB), sDMAW, scc=False))
    return p


def dma_buf_update():
    return [
        salu("s_add_u32", sDBI, sDBI, "1"),
        salu("s_add_u32", sDMABUF, sDMABUF, str(XWIN)),
        scmp("s_cmp_eq_u32", sDBI, str(NB)),
        salu("s_cselect_b32", sDBI, "0", sDBI, scc=False),
        salu("s_cselect_b32", sT1, str(NB * XWIN), "0", scc=False),
        salu("s_sub_u32", sDMABUF, sDMABUF, sT1),
    ]


def gen_O_body():
    spine = []
    spine += U2(18, 24)
    spine += O_tile(0)
    spine += O_tile(1)
    spine += O_tile(2)
    spine += U01()
    spine += U2(0, 18)
    s = Sched(spine)
    s.put(-1, ld_P())
    s.put(0, valu("v_xor_b32", paddr, "0x2000", paddr))
    s.spread(o_scalar_update(), 0, 5)
    for u in range(8):
        s.put(6 + u, ld_X(u))
    for u in range(8, 24):
        s.put(31 + 2 * (u - 8), ld_X(u))
    for f in range(8):
        s.put(63 + 2 * f, ld_X(24 + f))
    for f in range(16):
        s.put(78 + f, ld_X(32 + f))
    s.spread(cvtO(0, 0), 13, 19)
    s.spread(cvtO(0, 1), 18, 24)
    s.spread(cvtU(0, 0) + cvtU(0, 1), 14, 25)
    s.spread(cvtU(1, 0) + cvtU(1, 1), 22, 30)
    s.spread(cvtO(1, 0) + cvtO(1, 1), 32, 40)
    s.spread(cvtO(2, 0) + cvtO(2, 1), 41, 49)
    s.put(29, first_iter_wait(48))
    s.put(51, first_iter_wait(24))
    s.spread(o_readback(), 51, 56)
    s.spread(o_stores(), 55, 66)
    s.spread(cvtU(2, 0) + cvtU(2, 1), 57, 68)
    s.spread(dma_window(sDMAW, sDMABUF), 67, 90)
    s.put(91, dma_buf_update())
    s.put(94, delta_update())
    s.put(95, [valu("v_add_u32", cur[k], sDELTA, cur[k]) for k in range(4)])
    return s


def gen_O_tail1():
    spine = U2(18, 24) + O_tile(0) + O_tile(1) + O_tile(2)
    s = Sched(spine)
    s.put(-1, ld_P())
    s.put(0, valu("v_xor_b32", paddr, "0x2000", paddr))
    s.spread(o_scalar_update(), 0, 5)
    s.spread(cvtO(0, 0), 13, 19)
    s.spread(cvtO(0, 1), 18, 24)
    s.spread(cvtU(0, 0) + cvtU(0, 1), 14, 25)
    s.spread(cvtU(1, 0) + cvtU(1, 1), 22, 29)
    p = s.linear()
    p += cvtO(1, 0) + cvtO(1, 1) + cvtO(2, 0) + cvtO(2, 1) + o_readback() + cvtU(2, 0) + cvtU(2, 1) + o_stores()
    return p


def gen_O_tail2():
    spine = O_tile(0) + O_tile(1) + O_tile(2)
    s = Sched(spine)
    s.put(-1, ld_P())
    s.put(-1, o_scalar_update())
    s.spread(cvtO(0, 0), 7, 13)
    s.spread(cvtO(0, 1), 12, 18)
    p = s.linear()
    p += cvtO(1, 0) + cvtO(1, 1) + cvtO(2, 0) + cvtO(2, 1) + o_readback() + o_stores()
    return p


def gen_main():
    out = []
    p = []
    e = p.append
    e(scmp("s_cmp_ge_u32", S(2), "256"))
    e(raw("s_cbranch_scc1 L_end", ["scc"]))
    e(raw("s_load_dwordx2 s[4:5], s[0:1], 0", [S(0, 2)], [S(4, 2)]))
    e(raw("s_load_dwordx2 s[6:7], s[0:1], 24", [S(0, 2)], [S(6, 2)]))
    e(raw("s_load_dwordx2 s[24:25], s[0:1], 40", [S(0, 2)], [S(24, 2)]))
    L, H, L31, R_, T1, T2 = V(250), V(251), V(252), V(253), V(244), V(245)
    T3 = V(254)
    BK = [V(246 + k) for k in range(4)]
    e(valu("v_lshrrev_b32", T1, "6", V(0)))
    e(valu("v_and_b32", L, "63", V(0)))
    e(rfl(sWAVE, T1))
    e(valu("v_lshrrev_b32", H, "5", L))
    e(valu("v_and_b32", L31, "31", L))
    e(valu("v_lshrrev_b32", R_, "1", L31))
    e(valu("v_and_b32", R_, "7", R_))
    e(valu("v_mul_u32_u24", T1, str(ROWB), L31))
    for k in range(4):
        e(valu("v_add_u32", T2, str(2 * k), H))
        e(valu("v_xor_b32", T2, T2, R_))
        e(valu("v_lshlrev_b32", T2, "4", T2))
        e(valu("v_add_u32", BK[k], T1, T2))
        e(valu("v_add_u32", BK[k], str(XB), BK[k]))
    e(salu("s_mul_i32", sW0, S(2), str(NWIN), scc=False))
    e(salu("s_mov_b32", sN, "0", scc=False))
    e(salu("s_mov_b32", sBI, "0", scc=False))
    e(salu("s_mov_b32", sXWIN, str(XWIN), scc=False))
    e(salu("s_mov_b32", sC, f32bits(CSCALE), scc=False))
    e(salu("s_mov_b32", sNC, f32bits(-CSCALE), scc=False))
    e(waitcnt(lgkm=0))
    p += srd(8, 4, X_BYTES)
    p += srd(12, 6, X_BYTES)
    p += srd(16, 24, WS_BYTES)
    if DIAG:
        p += srd(44, 24, 4 << 20)
        e(salu("s_mov_b32", sSTI, "0", scc=False))
        e(salu("s_mov_b32", S(43), sWAVE, scc=False))
        e(valu("v_mov_b32", V(220), "0"))
        e(valu("v_mov_b32", V(236), "0"))
        e(valu("v_mov_b32", V(222), L))
        e(valu("v_mov_b32", V(238), L))
    e(scmp("s_cmp_ge_u32", sWAVE, "2"))
    e(raw("s_cbranch_scc1 L_owave", ["scc"]))
    out += finalize(p)

    p = []
    e = p.append
    LANE16 = V(210)
    e(valu("v_lshlrev_b32", LANE16, "4", L))
    for f in range(72):
        if f % 4 == 0:
            e(salu("s_mov_b32", sT1, str(f * 1024), scc=False))
        e(buf_load(Mfrag(f // 12, f % 12), LANE16, SRD_W, sT1, (f % 4) * 1024))
        if f == 59:
            e(waitcnt(vm=50))
    pre = []
    e2 = pre.append
    e2(salu("s_mul_i32", sT2, sWAVE, "12288", scc=False))
    e2(salu("s_sub_u32", sT3, "12288", sT2))
    for k in range(4):
        e2(valu("v_add_u32", nxt[k], sT2, BK[k]))
        e2(valu("v_add_u32", curO[k], sT3, BK[k]))
    e2(salu("s_mul_i32", sT2, sWAVE, str(4096 + 2048), scc=False))
    e2(salu("s_add_u32", sT2, sT2, str(PB + 8192)))
    e2(valu("v_lshlrev_b32", V(211), "4", L))
    e2(valu("v_add_u32", pown, sT2, V(211)))
    e2(salu("s_mul_i32", sT2, sWAVE, str(4096 - 2048), scc=False))
    e2(salu("s_add_u32", sT2, sT2, str(PB + 8192 + 2048)))
    e2(valu("v_add_u32", poth, sT2, V(211)))
    p = stamp(V(220)) + pre + p
    e = p.append
    p += stamp(V(220))
    e(barrier())
    p += stamp(V(220))
    for k in range(12):
        e(ld_Xo(k))
    e(waitcnt(lgkm=0))
    out += finalize(p)
    sb = gen_S_body()
    body = [label("L_s_loop")] + sb.linear()
    body += stamp(V(220)) + [barrier()] + stamp(V(220)) + [
             salu("s_add_u32", sN, sN, "1"),
             scmp("s_cmp_lt_u32", sN, str(NWIN)),
             raw("s_cbranch_scc1 L_s_loop", ["scc"])]
    print("S gaps:", sb.report(), file=sys.stderr)
    fb = finalize(body, loop=True)
    out += fb
    tail = gen_S_tail() + stamp(V(220)) + [barrier()] + stamp(V(220)) + stamp_store(V(220), V(221)) + [raw("s_endpgm")]
    out += finalize(tail, pre=fb[-40:])

    p = []
    e = p.append
    e(label("L_owave"))
    p += stamp(V(236), "s_memrealtime")
    p += stamp(V(236))
    e(salu("s_sub_u32", sWAVE, sWAVE, "2"))
    for k in range(4):
        e(valu("v_mov_b32", cur[k], BK[k]))
    e(valu("v_lshlrev_b32", paddr, "4", L))
    e(salu("s_lshl_b32", sT1, sWAVE, "2"))
    for b in range(3):
        e(valu("v_add_u32", T1, str(64 * b), L))
        e(valu("v_mul_u32_u24", T1, "2731", T1))
        e(valu("v_lshrrev_b32", T1, "17", T1))
        e(valu("v_or_b32", T1, sT1, T1))
        e(valu("v_xor_b32", T1, T1, L))
        e(valu("v_lshlrev_b32", dmaoff[b], "4", T1))
    e(salu("s_mul_i32", sT2, sWAVE, "12288", scc=False))
    e(salu("s_add_u32", sT2, sT2, str(OSB)))
    e(valu("v_and_b32", T1, "3", R_))
    e(valu("v_mul_u32_u24", T2, "192", L31))
    e(valu("v_add_u32", T2, sT2, T2))
    for a1 in range(2):
        e(valu("v_add_u32", T3, str(2 * a1), H))
        e(valu("v_xor_b32", T3, T3, T1))
        e(valu("v_lshlrev_b32", T3, "4", T3))
        e(valu("v_add_u32", oswr[a1], T2, T3))
    e(salu("s_mov_b32", sT3, str(IMROW), scc=False))
    e(salu("s_mul_i32", sT1, sWAVE, "192", scc=False))
    for b in range(3):
        e(valu("v_add_u32", T1, str(64 * b), L))
        e(valu("v_mul_u32_u24", T2, "5462", T1))
        e(valu("v_lshrrev_b32", T2, "16", T2))
        e(valu("v_lshrrev_b32", T3, "1", T2))
        e(valu("v_and_b32", T3, "3", T3))
        e(valu("v_xor_b32", T3, T3, T1))
        e(valu("v_lshlrev_b32", T3, "4", T3))
        e(valu("v_add_u32", osrd[b], sT2, T3))
        e(valu("v_mul_u32_u24", T3, "12", T2))
        e(valu("v_sub_u32", T1, T1, T3))
        e(valu("v_lshlrev_b32", T1, "4", T1))
        e(valu("v_add_u32", T1, sT1, T1))
        e(valu("v_and_b32", T3, "7", T2))
        e(valu("v_mul_u32_u24", T3, str(ROWB), T3))
        e(valu("v_add_u32", T1, T1, T3))
        e(valu("v_lshrrev_b32", T3, "3", T2))
        e(valu("v_mul_lo_u32", T3, T3, sT3))
        e(valu("v_add_u32", stoff[b], T1, T3))
    e(salu("s_mul_i32", sTMP, sWAVE, str(IMROW), scc=False))
    e(salu("s_mul_i32", sDMABUF, sWAVE, "3072", scc=False))
    e(salu("s_add_u32", sDMABUF, sDMABUF, str(XB)))
    e(salu("s_mov_b32", sDBI, "0", scc=False))
    LANE16 = V(255)
    e(valu("v_lshlrev_b32", LANE16, "4", L))

    def pro_dma(k):
        q = [salu("s_add_u32", sT3, sW0, str(k))]
        q += win_off(sDMAW, sT3)
        q.append(salu("s_add_u32", sDMAW, sDMAW, sTMP))
        q += dma_window(sDMAW, sDMABUF)
        q += dma_buf_update()
        return q

    p += pro_dma(0)
    p += pro_dma(1)
    e(salu("s_mul_i32", sT3, sWAVE, str(36 * 1024), scc=False))
    e(salu("s_add_u32", sT3, sT3, "73728"))
    worder = [(td, s_) for s_ in range(12) for td in range(2)] + [(2, s_) for s_ in range(12)]
    for td, s_ in worder:
        f = td * 12 + s_
        e(salu("s_add_u32", sT1, sT3, str((f // 4) * 4096)))
        e(buf_load(Wf[td][s_], LANE16, SRD_W, sT1, (f % 4) * 1024))
    e(waitcnt(vm=36))
    p += stamp(V(236))
    e(barrier())
    p += stamp(V(236))
    for k in range(2, NB - 1):
        p += pro_dma(k)
    out += finalize(p)
    ob_ = gen_O_body()
    body = [label("L_o_loop")] + ob_.linear()
    body += stamp(V(236)) + [waitcnt(vm=36)] + stamp(V(236)) + [barrier()] + stamp(V(236)) + [
             salu("s_add_u32", sN, sN, "1"),
             scmp("s_cmp_lt_u32", sN, str(NWIN)),
             raw("s_cbranch_scc1 L_o_loop", ["scc"])]
    print("O gaps:", ob_.report(), file=sys.stderr)
    fb = finalize(body, loop=True)
    out += fb
    t1 = gen_O_tail1() + stamp(V(236)) + [barrier()] + stamp(V(236)) + [salu("s_add_u32", sN, sN, "1")]
    t1 = finalize(t1, pre=fb[-40:])
    out += t1
    t2 = gen_O_tail2() + stamp(V(236)) + [waitcnt(vm=0)] + stamp(V(236)) + stamp(V(236), "s_memrealtime") + stamp_store(V(236), V(237)) + [label("L_end"), raw("s_endpgm")]
    out += finalize(t2, pre=t1[-40:])
    return out


HEADER = f"""; Kernarg layout for this problem (48 bytes, ptrs only, base s[0:1]):
; @launch kernel=swin_fold_kernel grid=(72,1,1) block=(64,1,1) lds=0
; @launch kernel={NAME}_kernel grid=(256,1,1) block=(256,1,1) lds={LDS_BYTES}
.amdgcn_target "amdgcn-amd-amdhsa--gfx950"
.text
"""


def kd(name, vgpr, sgpr, accum):
    return f""".amdhsa_kernel {name}
  .amdhsa_next_free_vgpr {vgpr}
  .amdhsa_next_free_sgpr {sgpr}
  .amdhsa_accum_offset {accum}
  .amdhsa_group_segment_fixed_size 0
  .amdhsa_kernarg_size 48
  .amdhsa_user_sgpr_count 2
  .amdhsa_user_sgpr_kernarg_segment_ptr 1
  .amdhsa_system_sgpr_workgroup_id_x 1
.end_amdhsa_kernel
"""


def main():
    s = HEADER
    s += f".globl {NAME}_kernel\n.p2align 8\n.type {NAME}_kernel,@function\n{NAME}_kernel:\n"
    s += text(gen_main()) + "\n"
    s += ".globl swin_fold_kernel\n.p2align 8\n.type swin_fold_kernel,@function\nswin_fold_kernel:\n"
    s += text(gen_fold()) + "\n"
    s += '.section .rodata,"a"\n.p2align 6\n'
    s += kd(f"{NAME}_kernel", 512, 64, 256)
    s += ".p2align 6\n"
    s += kd("swin_fold_kernel", 184, 48, 184)
    outp = sys.argv[1] if len(sys.argv) > 1 else f"cdna_kernels/{NAME}.s"
    open(outp, "w").write(s)


if __name__ == "__main__":
    main()
```
